```python
import torch

def _softmax(x, axis=-1):
    return torch.softmax(x, dim=axis)
def _gelu(x):
    return torch.nn.functional.gelu(x, approximate="tanh")
def _silu(x):
    return torch.nn.functional.silu(x)
def _sigmoid(x):
    return torch.sigmoid(x)
def _layernorm(x, axis=-1, eps=1e-5):
    m = x.mean(dim=axis, keepdim=True)
    v = x.var(dim=axis, keepdim=True, unbiased=False)
    return (x - m) / torch.sqrt(v + eps)
def _scatter_add(tgt, idx, src, axis=0):
    return tgt.clone().index_add_(axis, idx, src)
def _segment_sum(src, seg, n):
    out = torch.zeros((n,) + src.shape[1:], dtype=src.dtype)
    return out.index_add_(0, seg, src)
def _pad(x, pw):
    flat = tuple(v for pair in reversed(pw) for v in pair)
    return torch.nn.functional.pad(x, flat)

kernel_name = 'gated_mix__spectral_fnet__linear_kernel_hedgehog__prompt'

def setup_inputs():

    _w = (lambda a: (lambda t: t.to(torch.bfloat16) if t.is_floating_point() else t)(torch.as_tensor(a)))
    def _A_setup():
        B, S, D = 1, 2048, 448
        ns = torch.arange(S)[:, None] * torch.arange(S)[None, :]
        nd = torch.arange(D)[:, None] * torch.arange(D)[None, :]
        Ws_re = torch.cos(-2.0 * torch.pi * ns / S).to(float)
        Ws_im = torch.sin(-2.0 * torch.pi * ns / S).to(float)
        Wd_re = torch.cos(-2.0 * torch.pi * nd / D).to(float)
        Wd_im = torch.sin(-2.0 * torch.pi * nd / D).to(float)
        return {
            "x": _w((lambda *s: torch.randn(*s, dtype=torch.bfloat16) * 0.1)(B, S, D)),
            "dft_seq_re": _w(Ws_re),
            "dft_seq_im": _w(Ws_im),
            "dft_hid_re": _w(Wd_re),
            "dft_hid_im": _w(Wd_im),
        }
    _A_in = _A_setup()

    def _B_setup():
        B, S, D, H = 1, 2048, 448, 16
        Dh = D // H
        return {
            "x": _w((lambda *s: torch.randn(*s, dtype=torch.bfloat16) * 0.1)(B, S, D)),
            "wqkv": _w((lambda *s: torch.randn(*s, dtype=torch.bfloat16) * 1.6)(D, 3 * D)),
            "w_phi": _w((lambda *s: torch.randn(*s, dtype=torch.bfloat16) * 1.6)(H, Dh, Dh) * (Dh ** -0.5)),
            "wo": _w((lambda *s: torch.randn(*s, dtype=torch.bfloat16) * 1.6)(D, D)),
        }
    _B_in = _B_setup()

    return {
        "A_x": _A_in["x"],
        "A_dft_seq_re": _A_in["dft_seq_re"],
        "A_dft_seq_im": _A_in["dft_seq_im"],
        "A_dft_hid_re": _A_in["dft_hid_re"],
        "A_dft_hid_im": _A_in["dft_hid_im"],
        "B_x": _B_in["x"],
        "B_wqkv": _B_in["wqkv"],
        "B_w_phi": _B_in["w_phi"],
        "B_wo": _B_in["wo"],
        "gate_w": _w((lambda *s: torch.randn(*s, dtype=torch.bfloat16) * 0.1)(448) * 16.0),
    }

def reference(A_x, A_dft_seq_re, A_dft_seq_im, A_dft_hid_re, A_dft_hid_im, B_x, B_wqkv, B_w_phi, B_wo, gate_w):
    def _A_ref(x, dft_seq_re, dft_seq_im, dft_hid_re, dft_hid_im):
        a = torch.einsum("bsd,ed->bse", x, dft_hid_re)
        b = torch.einsum("bsd,ed->bse", x, dft_hid_im)
        y = torch.einsum("ts,bse->bte", dft_seq_re, a) - torch.einsum("ts,bse->bte", dft_seq_im, b)
        return y

    def _B_ref(x, wqkv, w_phi, wo):
        B, S, D = x.shape
        H = 16; Dh = D // H
        qkv = (lambda x, *d: x.permute(*d))((x @ wqkv).reshape(B, S, 3, H, Dh), 2, 0, 3, 1, 4)
        q, k, v = qkv[0], qkv[1], qkv[2]
        pq = torch.einsum("bhsd,hdf->bhsf", q, w_phi)
        pk = torch.einsum("bhsd,hdf->bhsf", k, w_phi)
        phi_q = torch.concatenate([_softmax(pq, axis=-1), _softmax(-pq, axis=-1)], axis=-1)
        phi_k = torch.concatenate([_softmax(pk, axis=-1), _softmax(-pk, axis=-1)], axis=-1)
        kv = torch.einsum("bhsf,bhsd->bhfd", phi_k, v)
        z  = torch.einsum("bhsf->bhf", phi_k)
        num = torch.einsum("bhqf,bhfd->bhqd", phi_q, kv)
        den = torch.einsum("bhqf,bhf->bhq", phi_q, z)[..., None] + 1e-6
        o = num / den
        return (lambda x, *d: x.permute(*d))(o, 0, 2, 1, 3).reshape(B, S, D) @ wo

    x = A_x
    g = _sigmoid((x * gate_w).sum(-1, keepdims=True))
    a = _A_ref(x, A_dft_seq_re, A_dft_seq_im, A_dft_hid_re, A_dft_hid_im)
    b = _B_ref(x, B_wqkv, B_w_phi, B_wo)
    return g * a + (1 - g) * b
```

```python
import re
from contextlib import contextmanager

KNAME = "gated_mix__spectral_fnet__linear_kernel_hedgehog__prompt"

_reg_re = re.compile(r"(?<![\w.])(?:([vas])\[(\d+):(\d+)\]|([vas])(\d+)(?![\w])|(vcc|exec|m0|scc)(?:_lo|_hi)?(?![\w]))")

TRANS = ("v_exp_f32", "v_log_f32", "v_rcp_f32", "v_rsq_f32", "v_sqrt_f32", "v_sin_f32", "v_cos_f32",
         "v_rcp_iflag_f32")


def regs_in(s):
    out = []
    for m in _reg_re.finditer(s):
        if m.group(1):
            for i in range(int(m.group(2)), int(m.group(3)) + 1):
                out.append(m.group(1) + str(i))
        elif m.group(4):
            out.append(m.group(4) + m.group(5))
        else:
            out.append(m.group(6))
    return out


def split_ops(s):
    ops, depth, cur = [], 0, ""
    for ch in s:
        if ch == "[":
            depth += 1
        if ch == "]":
            depth -= 1
        if ch == "," and depth == 0:
            ops.append(cur.strip())
            cur = ""
        else:
            cur += ch
    if cur.strip():
        ops.append(cur.strip())
    return ops


class Ins:
    __slots__ = ("text", "op", "cls", "rd", "wr", "passes", "srcc", "ab", "tag", "cond", "lds_dma", "wide_store",
                 "states", "opsel")

    def __init__(self, text, tag=None):
        self.text = text
        self.tag = tag
        body = text.split(";")[0].strip()
        parts = body.split(None, 1)
        op = parts[0]
        rest = parts[1] if len(parts) > 1 else ""
        self.op = op
        ops = split_ops(rest)
        self.passes = 0
        self.srcc = []
        self.ab = []
        self.lds_dma = False
        self.wide_store = False
        self.states = 1
        self.opsel = False
        rd, wr = [], []
        base = op.replace("_e32", "").replace("_e64", "").replace("_dpp", "").replace("_sdwa", "")
        if op.startswith("v_mfma"):
            self.cls = "mfma"
            self.passes = 8 if "32x32" in op else 4
            wr = regs_in(ops[0])
            self.ab = regs_in(ops[1]) + regs_in(ops[2])
            self.srcc = regs_in(ops[3])
            rd = self.ab + self.srcc
        elif op.startswith("v_"):
            self.cls = "valu"
            if base.startswith("v_cmpx"):
                wr = ["exec"] + (regs_in(ops[0]) if len(ops) == 3 else [])
                rd = sum((regs_in(o) for o in ops[-2:]), [])
            elif base.startswith("v_permlane") and "swap" in base or base == "v_swap_b32":
                wr = regs_in(ops[0]) + regs_in(ops[1])
                rd = list(wr)
            elif base in ("v_add_co_u32", "v_sub_co_u32", "v_addc_co_u32", "v_subb_co_u32", "v_subrev_co_u32",
                          "v_div_scale_f32", "v_mad_u64_u32"):
                wr = regs_in(ops[0]) + regs_in(ops[1])
                rd = sum((regs_in(o) for o in ops[2:]), [])
            elif base == "v_nop":
                pass
            else:
                wr = regs_in(ops[0])
                rd = sum((regs_in(o) for o in ops[1:]), [])
                if base.startswith(("v_fmac", "v_mac", "v_dot2c", "v_pk_fmac", "v_writelane")) or "_dpp" in op or (
                        "dst_unused:UNUSED_PRESERVE" in text) or "op_sel" in text:
                    rd += wr
                if base == "v_cndmask_b32" and len(ops) == 3:
                    rd.append("vcc")
            if "sdwa" in op or "op_sel" in text:
                self.opsel = True
        elif op.startswith("ds_"):
            self.cls = "ds"
            if op.startswith(("ds_read", "ds_bpermute", "ds_permute", "ds_swizzle")) or "_rtn" in op:
                wr = regs_in(ops[0])
                rd = sum((regs_in(o) for o in ops[1:]), [])
            else:
                rd = sum((regs_in(o) for o in ops), [])
        elif op.startswith(("buffer_", "global_")):
            self.cls = "vm"
            toks = body.split()
            if "lds" in toks or "_lds_" in op:
                self.lds_dma = True
                rd = regs_in(rest) + ["m0"]
            elif "load" in op or ("atomic" in op and "sc0" in toks):
                wr = regs_in(ops[0])
                rd = sum((regs_in(o) for o in ops[1:]), [])
                if "atomic" in op:
                    rd += wr
            elif op in ("buffer_inv", "buffer_wbl2"):
                pass
            else:
                rd = regs_in(rest)
                if op.endswith(("x3", "x4")):
                    self.wide_store = True
                    self.srcc = regs_in(ops[1] if op.startswith("global_") else ops[0])
        elif op.startswith(("s_load", "s_buffer_load", "s_memtime", "s_memrealtime")):
            self.cls = "smem"
            wr = regs_in(ops[0])
            rd = sum((regs_in(o) for o in ops[1:]), [])
        elif op.startswith("s_"):
            self.cls = "salu"
            if op == "s_nop":
                self.states = int(ops[0], 0) + 1
            elif op.startswith(("s_cmp", "s_waitcnt", "s_barrier", "s_branch", "s_cbranch", "s_endpgm", "s_sleep",
                                "s_setprio", "s_bitcmp", "s_sethalt", "s_setreg")):
                rd = regs_in(rest)
            else:
                wr = regs_in(ops[0])
                rd = sum((regs_in(o) for o in ops[1:]), [])
                if "saveexec" in op:
                    wr.append("exec")
        else:
            raise ValueError("unknown op " + text)
        self.rd = set(rd)
        self.wr = set(wr)


def need_states(p, c):
    n = 0
    pv = p.cls == "valu"
    pw = p.wr
    if pv:
        vw = {r for r in pw if r[0] in "va" and r != "vcc"}
        sw = {r for r in pw if r[0] == "s" and r != "scc" or r == "vcc"}
        if c.cls == "mfma" and vw & c.rd:
            n = max(n, 2)
        if c.cls == "mfma" and "exec" in pw:
            n = max(n, 4)
        if c.cls == "valu":
            cb = c.op
            if cb.startswith("v_permlane") and vw & c.rd:
                n = max(n, 2)
            if cb.startswith("v_permlane") and "exec" in pw:
                n = max(n, 4)
            if "dpp" in cb or "row_" in c.text or "quad_perm" in c.text:
                if vw & c.rd:
                    n = max(n, 2)
                if "exec" in pw:
                    n = max(n, 5)
            if cb.startswith(("v_readlane", "v_readfirstlane")) and vw & c.rd:
                n = max(n, 1)
            if cb.startswith(("v_readlane", "v_readfirstlane", "v_writelane")):
                if "exec" in pw:
                    n = max(n, 4)
                if sw & c.rd:
                    n = max(n, 4)
            if sw & c.rd:
                n = max(n, 2)
            if "exec" in pw and "exec" in c.rd:
                n = max(n, 2)
            if p.op.replace("_e32", "").replace("_e64", "") in TRANS and vw & (c.rd):
                n = max(n, 1)
            if p.opsel and vw & (c.rd | c.wr):
                n = max(n, 1)
            if p.op.startswith("v_dot") and vw & (c.rd | c.wr):
                if not (c.op == p.op and not (vw & (c.rd - c.wr))):
                    n = max(n, 3)
        if p.op.startswith("v_dot") and c.cls in ("mfma", "ds", "vm") and vw & (c.rd | c.wr):
            n = max(n, 3)
        if c.cls == "vm" and sw & c.rd:
            n = max(n, 5)
        if c.cls in ("salu", "smem") and sw & c.rd:
            n = max(n, 1)
    if p.cls == "salu" and "m0" in pw and c.cls == "vm" and c.lds_dma:
        n = max(n, 1)
    if p.cls == "vm" and p.wide_store and set(p.srcc) & c.wr:
        n = max(n, 2 if c.cls in ("valu", "mfma") else 1)
    if p.cls == "mfma":
        big = p.passes == 8
        d = p.wr
        if c.cls == "mfma":
            if d & set(c.ab):
                n = max(n, 12 if big else 8)
            if d & set(c.srcc):
                if not (set(c.srcc) == d and c.passes == p.passes):
                    n = max(n, 10 if big else 6)
            elif d & c.wr:
                n = max(n, 12 if big else 8)
        elif c.cls in ("valu", "ds", "vm"):
            if d & (c.rd | c.wr):
                n = max(n, 12 if big else 8)
            if c.cls == "valu" and set(p.srcc) & c.wr:
                n = max(n, 7 if big else 3)
            if c.cls in ("ds", "vm") and set(p.srcc) & c.wr:
                n = max(n, 7 if big else 3)
    return n


class K:
    def __init__(self):
        self.lines = []
        self.hist = []
        self.vm = []
        self.lg = []
        self.cond = ()
        self._cid = 0
        self.nlabel = 0
        self.count = 0
        self.nops = 0

    def raw(self, s):
        self.lines.append(s)

    def c(self, s):
        self.lines.append("    ; " + s)

    def label(self, name):
        self.lines.append(name + ":")

    def newlabel(self, base="L"):
        self.nlabel += 1
        return ".%s_%d" % (base, self.nlabel)

    def _younger(self, lst, idx):
        n = 0
        for o in lst[idx + 1:]:
            if o.cond == self.cond[:len(o.cond)]:
                n += 1
        return n

    def _emit(self, ins):
        need = 0
        dist = 0
        for p in reversed(self.hist):
            ns = need_states(p, ins)
            if ns - dist > need:
                need = ns - dist
            dist += p.states
            if dist >= 20:
                break
        while need > 0:
            k = min(need, 16)
            nop = Ins("s_nop %d" % (k - 1))
            self.lines.append("    " + nop.text)
            self.hist.append(nop)
            self.nops += 1
            self.count += 1
            need -= k
        self.lines.append("    " + ins.text)
        self.hist.append(ins)
        self.count += 1
        if len(self.hist) > 40:
            self.hist = self.hist[-30:]

    def waitcnt(self, vm=None, lgkm=None):
        parts = []
        if vm is not None:
            vm = min(vm, 63)
            parts.append("vmcnt(%d)" % vm)
            keep, n = [], 0
            for o in reversed(self.vm):
                if n >= vm:
                    break
                keep.append(o)
                if o.cond == self.cond[:len(o.cond)]:
                    n += 1
            if self.cond == ():
                self.vm = list(reversed(keep))
            else:
                self._mark_done(self.vm, keep)
        if lgkm is not None:
            lgkm = min(lgkm, 15)
            parts.append("lgkmcnt(%d)" % lgkm)
            keep, n = [], 0
            for o in reversed(self.lg):
                if n >= lgkm:
                    break
                keep.append(o)
                if o.cond == self.cond[:len(o.cond)]:
                    n += 1
            if self.cond == ():
                self.lg = list(reversed(keep))
            else:
                self._mark_done(self.lg, keep)
        self._emit(Ins("s_waitcnt " + " ".join(parts)))

    def _mark_done(self, lst, keep):
        ks = set(id(o) for o in keep)
        for o in list(lst):
            if id(o) not in ks:
                if o.cond[:len(self.cond)] == self.cond:
                    lst.remove(o)
                else:
                    self._done_in_cond[-1].add(id(o))

    def _is_done(self, o):
        return any(id(o) in s for s in getattr(self, "_done_in_cond", []))

    def _auto_wait(self, ins):
        touch = ins.rd | ins.wr
        vmn = lgn = None
        for i, o in enumerate(self.vm):
            if o.wr & touch and not self._is_done(o):
                n = self._younger(self.vm, i)
                vmn = n if vmn is None else min(vmn, n)
        for i, o in enumerate(self.lg):
            if o.wr & touch and not self._is_done(o):
                if any(x.cls == "smem" for x in self.lg):
                    n = 0
                else:
                    n = self._younger(self.lg, i)
                lgn = n if lgn is None else min(lgn, n)
        if vmn is not None and vmn >= 63:
            vmn = None
        if lgn is not None and lgn >= 15:
            lgn = 14 if lgn == 15 else None
            lgn = 14
        if vmn is not None or lgn is not None:
            self.waitcnt(vmn, lgn)

    def I(self, text, tag=None, nowait=False):
        ins = Ins(text, tag)
        ins.cond = self.cond
        if ins.op == "s_waitcnt":
            raise ValueError("use waitcnt()")
        if not nowait:
            self._auto_wait(ins)
        self._emit(ins)
        if ins.cls == "vm":
            self.vm.append(ins)
        elif ins.cls in ("ds", "smem"):
            self.lg.append(ins)
        return ins

    def __call__(self, text, tag=None, nowait=False):
        for ln in text.strip().split("\n"):
            ln = ln.strip()
            if ln:
                self.I(ln, tag, nowait)

    def wait_vm(self, tag):
        idx = [i for i, o in enumerate(self.vm) if o.tag == tag and not self._is_done(o)]
        if not idx:
            return
        n = self._younger(self.vm, idx[-1])
        self.waitcnt(vm=n)

    def wait_lg(self, tag=None):
        if tag is None:
            if self.lg:
                self.waitcnt(lgkm=0)
            return
        idx = [i for i, o in enumerate(self.lg) if o.tag == tag and not self._is_done(o)]
        if not idx:
            return
        n = 0 if any(x.cls == "smem" for x in self.lg) else self._younger(self.lg, idx[-1])
        self.waitcnt(lgkm=min(n, 14))

    def barrier(self):
        self._emit(Ins("s_barrier"))

    @contextmanager
    def cond_block(self):
        self._cid += 1
        self.cond = self.cond + (self._cid,)
        if not hasattr(self, "_done_in_cond"):
            self._done_in_cond = []
        self._done_in_cond.append(set())
        try:
            yield
        finally:
            self._done_in_cond.pop()
            self.cond = self.cond[:-1]

    def flush_hist(self, n=0):
        pass

    def srd(self, d, base, nbytes):
        self("s_mov_b32 s%d, s%d" % (d, base))
        self("s_mov_b32 s%d, s%d" % (d + 1, base + 1))
        self("s_mov_b32 s%d, 0x%x" % (d + 2, nbytes))
        self("s_mov_b32 s%d, 0x00020000" % (d + 3))

    def text(self):
        return "\n".join(self.lines) + "\n"


HEADER = open("cdna_kernels/%s.s.ref" % KNAME).read().split("; Override launch")[0] \
    if __import__("os").path.exists("cdna_kernels/%s.s.ref" % KNAME) else ""


def wrap(kernels, launches):
    s = HEADER
    if len(launches) == 1 and launches[0][0] == KNAME + "_kernel":
        _, g, b, l = launches[0]
        s += "; @launch grid=(%d,1,1) block=(%d,1,1) lds=%d\n" % (g, b, l)
    else:
        for (lab, g, b, l) in launches:
            s += "; @launch kernel=%s grid=(%d,1,1) block=(%d,1,1) lds=%d\n" % (lab, g, b, l)
    s += '.amdgcn_target "amdgcn-amd-amdhsa--gfx950"\n.text\n'
    for (lab, body, nv, na, ns) in kernels:
        s += ".globl %s\n.p2align 8\n.type %s,@function\n%s:\n" % (lab, lab, lab)
        s += body
    s += '.section .rodata,"a"\n'
    for (lab, body, nv, na, ns) in kernels:
        acc = (nv + 3) // 4 * 4
        tot = acc + na if na else nv
        s += ".p2align 6\n.amdhsa_kernel %s\n" % lab
        s += "  .amdhsa_next_free_vgpr %d\n" % tot
        s += "  .amdhsa_next_free_sgpr %d\n" % ns
        s += "  .amdhsa_accum_offset %d\n" % acc
        s += "  .amdhsa_group_segment_fixed_size 0\n  .amdhsa_kernarg_size 104\n"
        s += "  .amdhsa_user_sgpr_count 2\n  .amdhsa_user_sgpr_kernarg_segment_ptr 1\n"
        s += "  .amdhsa_system_sgpr_workgroup_id_x 1\n"
        s += ".end_amdhsa_kernel\n"
    return s
```

```python
import sys, struct
from asmlib import *

XS = lambda i: 16384 * i
WK = 98304
HH = 126976
VIMG = 155648
FLAG_KV = 0x1000
FLAG_O = 0x10000
GOFF = 0x20000
KVP = 0x100000
ZOFF = 0x200000
OOFF = 0x400000
TSOFF = 0x800000
WS_SIZE = 0x1000000
LOG2E = 1.4426950408889634


def fl(x):
    return "0x%08x" % struct.unpack("<I", struct.pack("<f", x))[0]


class RA:
    def __init__(self, lo, hi):
        self.free = [True] * 256
        for i in range(256):
            if i < lo or i >= hi:
                self.free[i] = False
        self.names = {}
        self.high = 0

    def get(self, name, n=1, al=None):
        al = al or (4 if n >= 4 else (2 if n >= 2 else 1))
        for b in range(0, 256, al):
            if b + n <= 256 and all(self.free[b:b + n]):
                for i in range(b, b + n):
                    self.free[i] = False
                self.names[name] = (b, n)
                self.high = max(self.high, b + n)
                return b
        raise RuntimeError("out of vgprs for " + name)

    def rel(self, *names):
        for name in names:
            b, n = self.names.pop(name)
            for i in range(b, b + n):
                self.free[i] = True


def vr(b, n):
    return "v[%d:%d]" % (b, b + n - 1)


def ar(b, n):
    return "a[%d:%d]" % (b, b + n - 1)


SX, SW, SPHI, SWO, SG, SOUT, SWS = 4, 8, 12, 16, 20, 24, 28
sw, sr, sh, shq, srot, sN = 32, 33, 34, 35, 36, 37
st0, st1, st2, st3 = 38, 39, 47, 55
SOX = 40
SOW = 48
sw4k, sw1k, ss2 = 56, 57, 58
st1_, sj, sp, su, ss2g, sidx = 59, 60, 61, 62, 63, 64
sc0, sc1_ = 65, 66
scnt = 67
smir, stz = 68, 69
TS0 = 70


def srd(b):
    return "s[%d:%d]" % (b, b + 3)


def gen(ts=False, stop=None, opts=None):
    o = dict(codepf=1)
    o.update(opts or {})
    k = K()
    R = RA(1, 256)
    nts = [0]

    def stamp():
        if ts:
            i = nts[0]
            nts[0] += 1
            assert TS0 + 2 * i + 1 <= 101
            k("s_memtime s[%d:%d]" % (TS0 + 2 * i, TS0 + 2 * i + 1))

    def exec_set(lo, hi):
        k("s_mov_b32 exec_lo, 0x%x" % lo)
        k("s_mov_b32 exec_hi, 0x%x" % hi)

    def exec_all():
        k("s_mov_b64 exec, -1")

    def poll(vaddr, vtmp, name):
        k("s_mov_b32 s%d, 0x20000" % scnt)
        lab = k.newlabel("Lp" + name)
        done = k.newlabel("Ld" + name)
        k.waitcnt(lgkm=0)
        k.label(lab)
        k("buffer_load_dword v%d, v%d, %s, 0 offen sc1" % (vtmp, vaddr, srd(SWS)), nowait=True)
        k.waitcnt(vm=0)
        k("v_cmp_ne_u32 vcc, s%d, v%d" % (sN, vtmp))
        k("s_cbranch_vccz %s" % done)
        k("s_sub_u32 s%d, s%d, 1" % (scnt, scnt))
        k("s_cbranch_scc0 %s" % lab)
        k.label(done)

    k("s_cmp_ge_u32 s2, 0x100")
    k("s_cbranch_scc1 .Lend")
    if ts:
        k("s_memrealtime s[%d:%d]" % (TS0, TS0 + 1))
        nts[0] = 1
        stamp()
    k("s_load_dwordx2 s[%d:%d], s[0:1], 0" % (SX, SX + 1))
    k("s_load_dwordx2 s[%d:%d], s[0:1], 48" % (SW, SW + 1))
    k("s_load_dwordx2 s[%d:%d], s[0:1], 56" % (SPHI, SPHI + 1))
    k("s_load_dwordx2 s[%d:%d], s[0:1], 72" % (SG, SG + 1))
    k("s_load_dwordx2 s[%d:%d], s[0:1], 96" % (SWS, SWS + 1))
    k("s_load_dwordx2 s[%d:%d], s[0:1], 64" % (SWO, SWO + 1))
    k("s_load_dwordx2 s[%d:%d], s[0:1], 80" % (SOUT, SOUT + 1))
    t = [R.get("t%d" % i) for i in range(8)]
    k("v_lshrrev_b32 v%d, 6, v0" % t[0])
    k("v_and_b32 v0, 63, v0")
    k("v_readfirstlane_b32 s%d, v%d" % (sw, t[0]))
    k("s_lshr_b32 s%d, s2, 3" % sidx)
    k("s_and_b32 s%d, s2, 3" % sr)
    k("s_and_b32 s%d, s%d, 3" % (st1, sidx))
    k("s_lshl2_add_u32 s%d, s%d, s%d" % (sr, st1, sr))
    k("s_lshr_b32 s%d, s2, 5" % sh)
    k("s_lshl1_add_u32 s%d, s%d, s%d" % (srot, st1, sh))
    k("s_and_b32 s%d, s2, 4" % st1)
    k("s_lshl1_add_u32 s%d, s%d, s%d" % (sh, st1, sh))
    k("s_xor_b32 s%d, s%d, 1" % (shq, sh))
    k("s_cmp_ge_u32 s%d, 7" % srot)
    k("s_cselect_b32 s%d, 7, 0" % st1)
    k("s_sub_u32 s%d, s%d, s%d" % (srot, srot, st1))
    k("s_lshl2_add_u32 s%d, s%d, s%d" % (ss2, sr, sw))
    k("s_lshl_b32 s%d, s%d, 12" % (sw4k, sw))
    k("s_lshl_b32 s%d, s%d, 10" % (sw1k, sw))
    vX = R.get("vX", 4)
    k("v_lshrrev_b32 v%d, 3, v0" % t[0])
    k("v_lshrrev_b32 v%d, 4, v0" % t[1])
    k("v_xor_b32 v%d, v%d, v0" % (t[2], t[1]))
    k("v_and_b32 v%d, 7, v%d" % (t[2], t[2]))
    k("v_mul_u32_u24 v%d, 0x%x, v%d" % (t[0], 57344, t[0]))
    k("s_mul_i32 s%d, s%d, 896" % (st0, ss2))
    k("v_lshl_add_u32 v%d, v%d, 4, v%d" % (t[0], t[2], t[0]))
    k("v_add_u32 v%d, s%d, v%d" % (vX, st0, t[0]))
    dq = 8 * 57344 - 1024
    k("s_mov_b32 s%d, 0x%x" % (st1, dq))
    k("v_xad_u32 v%d, v%d, 64, s%d" % (vX + 1, vX, st1))
    k("v_add_u32 v%d, 0x%x, v%d" % (vX + 2, 2 * dq, vX))
    k("v_add_u32 v%d, 0x%x, v%d" % (vX + 3, 2 * dq, vX + 1))
    vWk = R.get("vWk")
    vWq = R.get("vWq")
    k("v_lshrrev_b32 v%d, 2, v0" % t[0])
    k("v_and_b32 v%d, 3, v0" % t[3])
    k("v_lshlrev_b32 v%d, 4, v%d" % (t[3], t[3]))
    k("v_min_u32 v%d, 40, v%d" % (t[3], t[3]))
    k("s_movk_i32 s%d, 2688" % st1)
    k("v_mad_u32_u24 v%d, v%d, s%d, v%d" % (t[0], t[0], st1, t[3]))
    k("s_mul_i32 s%d, s%d, %d" % (st0, sw, 16 * 2688))
    k("s_mul_i32 s%d, s%d, 56" % (st1, sh))
    k("s_add_u32 s%d, s%d, s%d" % (st1, st1, st0))
    k("s_add_u32 s%d, s%d, 896" % (st1, st1))
    k("v_add_u32 v%d, s%d, v%d" % (vWk, st1, t[0]))
    k("s_mul_i32 s%d, s%d, 56" % (st1, shq))
    k("s_add_u32 s%d, s%d, s%d" % (st1, st1, st0))
    k("v_add_u32 v%d, s%d, v%d" % (vWq, st1, t[0]))
    k("s_mov_b32 s%d, s%d" % (st0, srot))
    for c in range(7):
        k("s_lshl_b32 s%d, s%d, 7" % (SOX + c, st0))
        k("s_mul_i32 s%d, s%d, %d" % (SOW + c, st0, 64 * 2688))
        if c < 6:
            k("s_add_u32 s%d, s%d, 1" % (st0, st0))
            k("s_cmp_eq_u32 s%d, 7" % st0)
            k("s_cselect_b32 s%d, 0, s%d" % (st0, st0))
    k("s_and_b32 s%d, s%d, 14" % (st0, sh))
    k("s_mul_i32 s%d, s%d, 1568" % (st0, st0))
    k("s_add_u32 s%d, s%d, s%d" % (st0, st0, sw1k))
    k("v_lshl_add_u32 v%d, v0, 4, s%d" % (t[4], st0))
    k("v_lshrrev_b32 v%d, 1, v0" % t[5])
    k("v_add_u32 v%d, s%d, v%d" % (t[6], srot, t[5]))
    k("v_subrev_u32 v%d, 7, v%d" % (t[7], t[6]))
    k("v_min_u32 v%d, v%d, v%d" % (t[6], t[6], t[7]))
    k("v_and_b32 v%d, 1, v0" % t[7])
    k("v_lshlrev_b32 v%d, 4, v%d" % (t[0], t[7]))
    k("v_lshl_add_u32 v%d, v%d, 7, v%d" % (t[6], t[6], t[0]))
    k("s_lshl_b32 s%d, s%d, 5" % (st0, sw))
    for b, n in ((SX, 2048 * 896), (SW, 448 * 2688), (SPHI, 16 * 1568), (SG, 896), (SWS, WS_SIZE), (SWO, 448 * 896),
                 (SOUT, 2048 * 896)):
        k("s_mov_b32 s%d, 0x%x" % (b + 2, n))
        k("s_mov_b32 s%d, 0x20000" % (b + 3))
    k.waitcnt(lgkm=0)

    def xdma(c):
        slot = c % 6
        k("s_add_u32 m0, s%d, 0x%x" % (sw4k, XS(slot)))
        for q in range(4):
            k("buffer_load_dwordx4 v%d, %s, s%d offen offset:%d lds" % (vX + q, srd(SX), SOX + c, q * 1024),
              tag="x%d" % c)

    def kdma(c):
        k("s_add_u32 m0, s%d, 0x%x" % (sw1k, WK + c * 4096))
        k("buffer_load_dwordx4 v%d, %s, s%d offen lds" % (vWk, srd(SW), SOW + c), tag="x%d" % c)

    def vdma(c):
        k("s_add_u32 m0, s%d, 0x%x" % (sw4k, XS(1 + c // 4) + (c % 4) * 1024 - 896))
        k("buffer_load_dwordx4 v%d, %s, s%d offen offset:896 lds" % (vWk, srd(SW), SOW + c), tag="v%d" % c)

    def qdma(c):
        k("s_add_u32 m0, s%d, 0x%x" % (sw4k, XS(3 + c // 4) + (c % 4) * 1024))
        k("buffer_load_dwordx4 v%d, %s, s%d offen lds" % (vWq, srd(SW), SOW + c), tag="q%d" % c)

    vGate = R.get("vGate", 4)
    k("s_load_dword s%d, s[%d:%d], 0" % (sN, SWS, SWS + 1))
    xdma(0)
    kdma(0)
    k("s_add_u32 m0, s%d, 0x%x" % (sw1k, XS(5)))
    k("buffer_load_dwordx4 v%d, %s, 0 offen lds" % (t[4], srd(SPHI)), tag="x0")
    k("buffer_load_dwordx4 %s, v%d, %s, s%d offen" % (vr(vGate, 4), t[6], srd(SG), st0))
    xdma(1)
    kdma(1)
    if o["codepf"]:
        k("s_getpc_b64 s[%d:%d]" % (st0, st1))
        k("s_lshl2_add_u32 s%d, s%d, s%d" % (st2, sidx, sw))
        k("s_lshl_b32 s%d, s%d, 7" % (st2, st2))
        k("s_min_u32 s%d, s%d, CODE_PF_MAX" % (st2, st2))
        k("v_and_b32 v%d, 31, v0" % t[0])
        k("v_lshl_add_u32 v%d, v%d, 2, s%d" % (t[0], t[0], st2))
        vpf = R.get("vpf")
        k("global_load_dword v%d, v%d, s[%d:%d]" % (vpf, t[0], st0, st1))
    xdma(2)
    kdma(2)
    stamp()
    vGw = R.get("vGw")
    k("v_lshlrev_b32 v%d, 9, v%d" % (t[7], t[7]))
    k("v_lshl_add_u32 v%d, v%d, 12, v%d" % (t[7], t[5], t[7]))
    k("s_add_u32 s%d, s%d, 0x%x" % (st0, sw1k, HH + 31 * 16))
    k("v_add_u32 v%d, s%d, v%d" % (vGw, st0, t[7]))
    k("v_mov_b32 v%d, 0x3f803f80" % t[4])
    k("v_mov_b32 v%d, 0x3f803f80" % t[5])
    k("s_lshl_b32 s%d, s%d, 11" % (st0, sw))
    k("s_add_u32 s%d, s%d, 0x%x" % (st0, st0, VIMG + 24 * 16))
    k("v_lshrrev_b32 v%d, 1, v0" % t[0])
    k("v_lshl_add_u32 v%d, v%d, 9, s%d" % (t[0], t[0], st0))
    k("v_and_b32 v%d, 1, v0" % t[1])
    k("v_lshl_add_u32 v%d, v%d, 3, v%d" % (t[0], t[1], t[0]))
    assert t[4] % 2 == 0 or True
    vOne = R.get("vOne", 2)
    k("v_mov_b32 v%d, 0x3f803f80" % vOne)
    k("v_mov_b32 v%d, 0x3f803f80" % (vOne + 1))
    exec_set(0xff, 0)
    k("ds_write_b64 v%d, %s" % (t[0], vr(vOne, 2)))
    exec_all()
    R.rel("vOne")
    vHf = R.get("vHf")
    vRow = R.get("vRow")
    k("v_lshrrev_b32 v%d, 5, v0" % vHf)
    k("v_and_b32 v%d, 31, v0" % vRow)
    vXr = R.get("vXr", 8)
    k("v_bfe_u32 v%d, v0, 1, 3" % t[0])
    k("v_xor_b32 v%d, v%d, v%d" % (t[0], t[0], vHf))
    k("v_lshlrev_b32 v%d, 4, v%d" % (t[0], t[0]))
    k("v_lshl_add_u32 v%d, v%d, 7, v%d" % (t[0], vRow, t[0]))
    k("v_add_u32 v%d, s%d, v%d" % (vXr, sw4k, t[0]))
    for ks in range(1, 4):
        k("v_xor_b32 v%d, %d, v%d" % (vXr + ks, 32 * ks, vXr))
    for ks in range(4):
        k("v_add_u32 v%d, 0x10000, v%d" % (vXr + 4 + ks, vXr + ks))
    vWr0 = R.get("vWr0")
    vWrK = R.get("vWrK")
    k("v_bfe_u32 v%d, v0, 2, 2" % t[0])
    k("v_lshl_add_u32 v%d, v%d, 3, v%d" % (t[0], vHf, t[0]))
    k("v_lshlrev_b32 v%d, 6, v%d" % (t[0], t[0]))
    k("v_bfe_u32 v%d, v0, 4, 1" % t[1])
    k("v_lshl_add_u32 v%d, v%d, 5, v%d" % (t[0], t[1], t[0]))
    k("v_and_b32 v%d, 3, v0" % t[1])
    k("v_lshl_add_u32 v%d, v%d, 3, v%d" % (vWr0, t[1], t[0]))
    k("v_add_u32 v%d, 0x%x, v%d" % (vWrK, WK, vWr0))
    vL16 = R.get("vL16")
    vHr = R.get("vHr")
    vHw = R.get("vHw")
    k("v_lshlrev_b32 v%d, 4, v0" % vL16)
    k("v_add_u32 v%d, 0x%x, v%d" % (vHr, HH, vL16))
    k("v_add_u32 v%d, s%d, v%d" % (vHw, sw1k, vHr))
    vSt = R.get("vSt")
    vHs = R.get("vHs")
    vBa = R.get("vBa")
    k("s_mul_i32 s%d, s%d, 14" % (st0, sh))
    k("v_and_b32 v%d, 15, v0" % t[0])
    k("v_add_u32 v%d, s%d, v%d" % (t[0], st0, t[0]))
    k("v_cvt_f32_u32 v%d, v%d" % (t[0], t[0]))
    k("v_mul_f32 v%d, %s, v%d" % (vSt, fl(1.0 / 448), t[0]))
    k("v_mul_f32 v%d, 0.5, v%d" % (vHs, vSt))
    k("v_and_b32 v%d, 16, v0" % t[0])
    k("v_cvt_f32_u32 v%d, v%d" % (t[0], t[0]))
    k("v_mul_f32 v%d, %s, v%d" % (t[0], fl(1.0 / 64), t[0]))
    k("s_lshl_b32 s%d, s%d, 4" % (st0, sw))
    k("v_lshl_add_u32 v%d, v%d, 3, s%d" % (t[1], vHf, st0))
    k("v_cvt_f32_u32 v%d, v%d" % (t[1], t[1]))
    k("v_fma_f32 v%d, v%d, v%d, v%d" % (vBa, t[1], vSt, t[0]))
    hA = R.get("hA", 8)
    hP = R.get("hP", 4)

    def hgen(c):
        L = []
        L.append("v_cvt_f32_u32 v%d, s%d" % (hA, SOX + c))
        L.append("v_fma_f32 v%d, v%d, v%d, v%d" % (hA, hA, vHs, vBa))
        L.append("v_fract_f32 v%d, v%d" % (hA, hA))
        for j in range(1, 8):
            L.append("v_add_f32 v%d, v%d, v%d" % (hA + j, hA + j - 1, vSt))
        for j in range(8):
            L.append("v_cos_f32 v%d, v%d" % (hA + j, hA + j))
        for j in range(4):
            L.append("v_cvt_pk_bf16_f32 v%d, v%d, v%d" % (hP + j, hA + 2 * j, hA + 2 * j + 1))
        L.append("s_mov_b32 exec_lo, 0x7fffffff")
        L.append("s_mov_b32 exec_hi, 0x7fffffff")
        L.append("ds_write_b128 v%d, %s offset:%d" % (vHw, vr(hP, 4), c * 4096))
        L.append("s_mov_b64 exec, -1")
        return L

    for c in range(3):
        for s in hgen(c):
            k(s)
    vFc = R.get("vFc", 8)
    vFs = R.get("vFs", 8)
    k("v_cvt_f32_u32 v%d, v%d" % (t[0], vRow))
    k("v_mul_f32 v%d, %s, v%d" % (t[0], fl(1.0 / 32), t[0]))
    k("v_lshl_add_u32 v%d, v%d, 8, s%d" % (t[1], vHf, ss2))
    k("v_cvt_f32_u32 v%d, v%d" % (t[1], t[1]))
    k("v_mul_f32 v%d, %s, v%d" % (t[1], fl(1.0 / 64), t[1]))
    k("v_mul_f32 v%d, v%d, v%d" % (t[1], t[1], t[0]))
    for i in range(8):
        ks, j = i >> 2, 2 * (i & 3)
        for e in range(2):
            cst = 16 * ks + 8 * ((j + e) >> 2) + ((j + e) & 3)
            k("v_fmamk_f32 v%d, v%d, %s, v%d" % (t[2 + e], t[0], fl(cst), t[1]))
        k("v_cos_f32 v%d, v%d" % (t[4], t[2]))
        k("v_cos_f32 v%d, v%d" % (t[5], t[3]))
        k("v_sin_f32 v%d, -v%d" % (t[6], t[2]))
        k("v_sin_f32 v%d, -v%d" % (t[7], t[3]))
        k("v_cvt_pk_bf16_f32 v%d, v%d, v%d" % (vFc + i, t[4], t[5]))
        k("v_cvt_pk_bf16_f32 v%d, v%d, v%d" % (vFs + i, t[6], t[7]))
    vGK = R.get("vGK")
    vGQ = R.get("vGQ")
    k("v_mul_u32_u24 v%d, 224, v%d" % (t[0], vHf))
    k("v_bfe_u32 v%d, v0, 2, 1" % t[1])
    k("v_mad_u32_u24 v%d, v%d, 28, v%d" % (t[0], t[1], t[0]))
    k("v_and_b32 v%d, 24, v0" % t[1])
    k("v_add_u32 v%d, v%d, v%d" % (t[0], t[0], t[1]))
    k("v_and_b32 v%d, 3, v0" % t[1])
    k("v_lshl_add_u32 v%d, v%d, 1, v%d" % (t[0], t[1], t[0]))
    k("s_and_b32 s%d, s%d, 1" % (st0, sh))
    k("s_mul_i32 s%d, s%d, 1568" % (st0, st0))
    k("s_add_u32 s%d, s%d, 0x%x" % (st1, st0, XS(5)))
    k("v_add_u32 v%d, s%d, v%d" % (vGK, st1, t[0]))
    k("s_sub_u32 s%d, 0x%x, s%d" % (st1, XS(5) + 1568, st0))
    k("v_add_u32 v%d, s%d, v%d" % (vGQ, st1, t[0]))
    vPK = R.get("vPK", 8)
    vPQ = R.get("vPQ", 8)
    for i in range(8):
        k("v_mov_b32 v%d, 0" % (vPK + i))
        k("v_mov_b32 v%d, 0" % (vPQ + i))
    k("s_add_u32 s%d, s%d, 0x9e3779b9" % (sN, sN))
    stamp()

    gT = R.get("gT", 32)

    def gathers():
        for n, ad in enumerate((vGK, vGQ)):
            for i in range(8):
                for hi in range(2):
                    ks, j = i >> 2, 2 * (i & 3) + hi
                    if ks == 0:
                        d = 8 * (j >> 2) + (j & 3)
                    else:
                        d = 16 + j if j < 4 else 20 + (j & 3)
                    k("ds_read_u16 v%d, v%d offset:%d" % (gT + 16 * n + 2 * i + hi, ad, d * 56))

    def gather_pack():
        exec_set(0x33ffffff, 0x33ffffff)
        for part in range(2):
            if part == 1:
                k("s_mov_b32 exec_lo, 0")
            for n, dst in enumerate((vPK, vPQ)):
                for i in (range(6) if part == 0 else range(6, 8)):
                    k("v_lshl_or_b32 v%d, v%d, 16, v%d" % (dst + i, gT + 16 * n + 2 * i + 1, gT + 16 * n + 2 * i))
        exec_all()

    KT = R.get("KT", 16)
    HA = R.get("HA", 16)
    fW = R.get("fW", 16)
    fH = R.get("fH", 16)
    for c in range(7):
        k.wait_vm("x%d" % c)
        if c == 0:
            exec_set(0x3fff, 0)
            k("ds_write_b128 v%d, %s" % (vGw, vr(vGate, 4)))
            exec_all()
        k.wait_lg()
        k.barrier()
        if c in (0, 6):
            stamp()
        slot = c % 6
        for ks in range(4):
            k("ds_read_b64_tr_b16 %s, v%d offset:%d" % (vr(fW + 4 * ks, 2), vWrK, c * 4096 + ks * 1024))
            k("ds_read_b64_tr_b16 %s, v%d offset:%d" % (vr(fW + 4 * ks + 2, 2), vWrK, c * 4096 + ks * 1024 + 256))
            k("ds_read_b128 %s, v%d offset:%d" % (ar(16 * c + 4 * ks, 4), vXr + ks + (4 if slot >= 4 else 0),
                                                  XS(slot) & 0xffff))
            k("ds_read_b128 %s, v%d offset:%d" % (vr(fH + 4 * ks, 4), vHr, c * 4096 + ks * 1024))
        fill = []
        if c + 3 <= 6:
            fill = hgen(c + 3)
        mf = []
        for ks in range(4):
            x = ar(16 * c + 4 * ks, 4)
            first = c == 0 and ks == 0
            mf.append("v_mfma_f32_32x32x16_bf16 %s, %s, %s, %s" % (vr(KT, 16), vr(fW + 4 * ks, 4), x,
                                                                  "0" if first else vr(KT, 16)))
            mf.append("v_mfma_f32_32x32x16_bf16 %s, %s, %s, %s" % (vr(HA, 16), x, vr(fH + 4 * ks, 4),
                                                                  "0" if first else vr(HA, 16)))
        nf = len(fill)
        fi = 0
        for i, m in enumerate(mf):
            k(m)
            tgt = min(nf, (i + 1) * 3) if i < 7 else nf
            while fi < tgt:
                k(fill[fi])
                fi += 1
        if c == 0:
            gathers()
        if c == 1:
            gather_pack()
        if c + 3 <= 6:
            xdma(c + 3)
            kdma(c + 3)
        elif c == 4:
            for cc in range(4):
                vdma(cc)
        elif c == 5:
            for cc in range(4, 7):
                vdma(cc)
        elif c == 6:
            for cc in range(7):
                qdma(cc)
    R.rel("gT", "vGate", "vGw", "vGK", "vGQ", "vSt", "vHs", "vBa", "hA", "hP", "vHw", "vHr", "vXr", "vX", "fH", "vWrK")

    def softmax(P, out):
        mx, mn, a, b = t[0], t[1], t[2], t[3]
        k("v_max3_f32 v%d, v%d, v%d, v%d" % (mx, P, P + 1, P + 2))
        k("v_max3_f32 v%d, -v%d, -v%d, -v%d" % (mn, P, P + 1, P + 2))
        for i in range(3, 13, 2):
            k("v_max3_f32 v%d, v%d, v%d, v%d" % (mx, mx, P + i, P + i + 1))
            k("v_max3_f32 v%d, v%d, -v%d, -v%d" % (mn, mn, P + i, P + i + 1))
        k("v_max_f32 v%d, v%d, v%d" % (mx, mx, P + 13))
        k("v_max_f32_e64 v%d, v%d, -v%d" % (mn, mn, P + 13))
        k("v_permlane32_swap_b32 v%d, v%d" % (mx, mn))
        k("v_max_f32 v%d, v%d, v%d" % (mx, mx, mn))
        k("v_mul_f32 v%d, %s, v%d" % (mx, fl(-LOG2E), mx))
        k("v_mov_b32 v%d, v%d" % (mn, mx))
        k("s_mov_b32 s%d, %s" % (sc0, fl(LOG2E)))
        k("v_permlane32_swap_b32 v%d, v%d" % (mx, mn))
        E = R.get("smE", 14)
        for i in range(14):
            k("v_fma_f32 v%d, v%d, s%d, v%d" % (E + i, P + i, sc0, mx))
            k("v_fma_f32 v%d, -v%d, s%d, v%d" % (P + i, P + i, sc0, mn))
        for i in range(14):
            k("v_exp_f32 v%d, v%d" % (E + i, E + i))
            k("v_exp_f32 v%d, v%d" % (P + i, P + i))
        k("v_add_f32 v%d, v%d, v%d" % (a, E, E + 1))
        k("v_add_f32 v%d, v%d, v%d" % (b, P, P + 1))
        for i in range(2, 14):
            k("v_add_f32 v%d, v%d, v%d" % (a, a, E + i))
            k("v_add_f32 v%d, v%d, v%d" % (b, b, P + i))
        k("v_permlane32_swap_b32 v%d, v%d" % (a, b))
        k("v_add_f32 v%d, v%d, v%d" % (a, a, b))
        k("v_rcp_f32 v%d, v%d" % (a, a))
        k("v_mov_b32 v%d, 0" % (out + 7))
        k("v_mov_b32 v%d, v%d" % (b, a))
        k("v_mov_b32 v%d, 0" % (out + 15))
        k("v_permlane32_swap_b32 v%d, v%d" % (a, b))
        for i in range(7):
            k("v_mul_f32 v%d, v%d, v%d" % (E + 2 * i, E + 2 * i, a))
            k("v_mul_f32 v%d, v%d, v%d" % (E + 2 * i + 1, E + 2 * i + 1, a))
            k("v_cvt_pk_bf16_f32 v%d, v%d, v%d" % (out + i, E + 2 * i, E + 2 * i + 1))
        for i in range(7):
            k("v_mul_f32 v%d, v%d, v%d" % (P + 2 * i, P + 2 * i, b))
            k("v_mul_f32 v%d, v%d, v%d" % (P + 2 * i + 1, P + 2 * i + 1, b))
            k("v_cvt_pk_bf16_f32 v%d, v%d, v%d" % (out + 8 + i, P + 2 * i, P + 2 * i + 1))
        R.rel("smE")

    def phi_proj(acc, wf, P):
        B = R.get("pB", 8)
        for i in range(8):
            k("v_cvt_pk_bf16_f32 v%d, v%d, v%d" % (B + i, acc + 2 * i, acc + 2 * i + 1))
        k("v_mfma_f32_32x32x16_bf16 %s, %s, %s, 0" % (vr(P, 16), vr(wf, 4), vr(B, 4)))
        k("v_mfma_f32_32x32x16_bf16 %s, %s, %s, %s" % (vr(P, 16), vr(wf + 4, 4), vr(B + 4, 4), vr(P, 16)))
        R.rel("pB")

    PK = R.get("PK", 16)
    phi_proj(KT, vPK, PK)
    R.rel("KT", "vPK")
    k("s_add_u32 s%d, s%d, 2048" % (st0, sw4k))
    k("v_lshl_add_u32 v%d, v%d, 4, s%d" % (t[4], vHf, st0))
    exec_set(0x80000000, 0x80000000)
    for mm in range(4):
        k("ds_write_b128 v%d, %s offset:%d" % (t[4], vr(HA + 4 * mm, 4), 32 * mm))
    exec_all()
    hB = R.get("hB", 8)
    for i in range(8):
        k("v_cvt_pk_bf16_f32 v%d, v%d, v%d" % (hB + i, HA + 2 * i, HA + 2 * i + 1))
    vLog = R.get("vLog")
    k("v_lshl_add_u32 v%d, v%d, 2, s%d" % (t[5], vRow, st0))
    k("ds_read_b32 v%d, v%d" % (vLog, t[5]))
    ZP = HA
    ZQ = R.get("ZQ", 16)
    k("v_mfma_f32_32x32x16_bf16 %s, %s, %s, 0" % (vr(ZQ, 16), vr(hB, 4), vr(vFs, 4)))
    k("v_mfma_f32_32x32x16_bf16 %s, %s, %s, %s" % (vr(ZQ, 16), vr(hB + 4, 4), vr(vFs + 4, 4), vr(ZQ, 16)))
    k.wait_lg()
    k("v_mfma_f32_32x32x16_bf16 %s, %s, %s, 0" % (vr(ZP, 16), vr(hB, 4), vr(vFc, 4)))
    k("v_mfma_f32_32x32x16_bf16 %s, %s, %s, %s" % (vr(ZP, 16), vr(hB + 4, 4), vr(vFc + 4, 4), vr(ZP, 16)))
    PH = R.get("PH", 16)
    softmax(PK, PH)
    k("v_and_b32 v%d, 7, v0" % t[0])
    k("v_xor_b32 v%d, v%d, v%d" % (t[0], t[0], vHf))
    k("v_lshlrev_b32 v%d, 4, v%d" % (t[0], t[0]))
    k("v_lshl_add_u32 v%d, v%d, 7, v%d" % (t[0], vRow, t[0]))
    k("s_add_u32 s%d, s%d, 0x%x" % (st0, sw4k, XS(5)))
    k("v_add_u32 v%d, s%d, v%d" % (t[0], st0, t[0]))
    for ks in range(1, 4):
        k("v_xor_b32 v%d, %d, v%d" % (t[ks], 32 * ks, t[0]))
    for ks in range(4):
        k("ds_write_b128 v%d, %s" % (t[ks], vr(PH + 4 * ks, 4)))
    R.rel("PK", "PH")
    stamp()
    vZ = R.get("vZ", 8)
    for i in range(8):
        k("v_sub_f32 v%d, v%d, v%d" % (t[4], ZP + i, ZQ + 8 + i))
        k("v_add_f32 v%d, v%d, v%d" % (t[5], ZP + 8 + i, ZQ + i))
        k("v_cvt_pk_bf16_f32 v%d, v%d, v%d" % (vZ + i, t[4], t[5]))
    k("v_bfe_u32 v%d, v0, 1, 2" % t[4])
    k("v_xor_b32 v%d, v%d, v%d" % (t[4], t[4], vHf))
    k("v_lshlrev_b32 v%d, 4, v%d" % (t[4], t[4]))
    k("v_lshl_add_u32 v%d, v%d, 6, v%d" % (t[4], vRow, t[4]))
    k("v_add_u32 v%d, s%d, v%d" % (t[4], sw4k, t[4]))
    k("v_xor_b32 v%d, 32, v%d" % (t[5], t[4]))
    k("ds_write_b128 v%d, %s" % (t[4], vr(vZ, 4)))
    k("ds_write_b128 v%d, %s" % (t[5], vr(vZ + 4, 4)))
    R.rel("HA", "ZQ", "hB", "vFc", "vFs")
    vG = R.get("vG")
    k("v_mul_f32 v%d, %s, v%d" % (vG, fl(-LOG2E), vLog))
    k("v_exp_f32 v%d, v%d" % (vG, vG))
    k("v_add_f32 v%d, 1.0, v%d" % (vG, vG))
    k("v_rcp_f32 v%d, v%d" % (vG, vG))
    R.rel("vLog")
    k("v_lshrrev_b32 v%d, 4, v0" % t[0])
    k("v_bfe_u32 v%d, v0, 2, 2" % t[1])
    k("v_xor_b32 v%d, v%d, v%d" % (t[1], t[1], vHf))
    k("v_lshlrev_b32 v%d, 4, v%d" % (t[1], t[1]))
    k("v_lshl_add_u32 v%d, v%d, 6, v%d" % (t[1], t[0], t[1]))
    k("v_and_b32 v%d, 3, v0" % t[2])
    k("v_lshl_add_u32 v%d, v%d, 2, v%d" % (t[1], t[2], t[1]))
    k("s_lshl_b32 s%d, s%d, 9" % (st0, sw))
    k("v_add_u32 v%d, s%d, v%d" % (t[1], st0, t[1]))
    k("s_movk_i32 s%d, 0x100" % st1)
    k("v_xad_u32 v%d, v%d, 32, s%d" % (t[2], t[1], st1))
    k("v_and_b32 v%d, 15, v0" % t[3])
    k("v_lshlrev_b32 v%d, 4, v%d" % (t[3], t[3]))
    k("v_lshl_add_u32 v%d, v%d, 16, v%d" % (t[3], t[0], t[3]))
    k("s_lshl_b32 s%d, s%d, 19" % (st0, sw))
    k("s_lshl_b32 s%d, s%d, 12" % (st1, sr))
    k("s_add_u32 s%d, s%d, s%d" % (st0, st0, st1))
    k("s_lshl_b32 s%d, s%d, 8" % (st1, sh))
    k("s_add_u32 s%d, s%d, s%d" % (st0, st0, st1))
    k("s_add_u32 s%d, s%d, 0x%x" % (st0, st0, ZOFF))
    k("s_add_u32 s%d, s%d, 0x40000" % (st1, st0))
    k.wait_vm("v3")
    k.wait_lg()
    k.barrier()
    k("ds_read2st64_b32 %s, v%d offset0:0 offset1:16" % (vr(vZ, 2), t[1]))
    k("ds_read2st64_b32 %s, v%d offset0:32 offset1:48" % (vr(vZ + 2, 2), t[1]))
    k("ds_read2st64_b32 %s, v%d offset0:0 offset1:16" % (vr(vZ + 4, 2), t[2]))
    k("ds_read2st64_b32 %s, v%d offset0:32 offset1:48" % (vr(vZ + 6, 2), t[2]))

    def wread(dst, base, off):
        k("ds_read_b64_tr_b16 %s, v%d offset:%d" % (vr(dst, 2), base, off))
        k("ds_read_b64_tr_b16 %s, v%d offset:%d" % (vr(dst + 2, 2), base, off + 256))

    def wgemm(acc, base, off0, chunks, swap, first):
        seq = [(c, ks) for c in chunks for ks in range(4)]
        off = lambda c, ks: off0 + (c // 4) * 16384 + ks * 4096 + (c % 4) * 1024
        for i in range(min(3, len(seq))):
            wread(fW + 4 * (i % 4), base, off(*seq[i]))
        for i, (c, ks) in enumerate(seq):
            if i + 3 < len(seq):
                wread(fW + 4 * ((i + 3) % 4), base, off(*seq[i + 3]))
            x = ar(16 * c + 4 * ks, 4)
            wv = vr(fW + 4 * (i % 4), 4)
            a, b = (x, wv) if swap else (wv, x)
            k("v_mfma_f32_32x32x16_bf16 %s, %s, %s, %s" % (vr(acc, 16), a, b,
                                                          "0" if (first and i == 0) else vr(acc, 16)))

    k("buffer_store_dwordx4 %s, v%d, %s, s%d offen sc1" % (vr(vZ, 4), t[3], srd(SWS), st0))
    k("buffer_store_dwordx4 %s, v%d, %s, s%d offen sc1" % (vr(vZ + 4, 4), t[3], srd(SWS), st1))
    k("s_cmp_lg_u32 s%d, 0" % sh)
    k("s_cbranch_scc1 .Lnog")
    with k.cond_block():
        k("s_lshl_b32 s%d, s%d, 7" % (st2, ss2))
        k("s_add_u32 s%d, s%d, 0x%x" % (st2, st2, GOFF))
        k("v_lshlrev_b32 v%d, 2, v%d" % (t[4], vRow))
        k("buffer_store_dword v%d, v%d, %s, s%d offen sc1" % (vG, t[4], srd(SWS), st2))
    k.label(".Lnog")
    VA = R.get("VA", 16)
    wgemm(VA, vWr0, XS(1), range(4), True, True)
    k.wait_vm("v6")
    k.barrier()
    wgemm(VA, vWr0, XS(1), range(4, 7), True, False)
    R.rel("vZ")
    k("s_lshl_b32 s%d, s%d, 11" % (st0, sw))
    k("s_add_u32 s%d, s%d, 0x%x" % (st0, st0, VIMG))
    k("v_add_u32 v%d, s%d, v%d" % (t[0], st0, vL16))
    k("v_bfe_u32 v%d, v0, 2, 3" % t[1])
    k("v_lshl_add_u32 v%d, v%d, 4, v%d" % (t[2], vHf, t[1]))
    k("v_bfe_u32 v%d, v0, 1, 1" % t[3])
    k("s_lshl_b32 s%d, s%d, 1" % (st1, sw))
    k("v_add_u32 v%d, s%d, v%d" % (t[3], st1, t[3]))
    k("v_xor_b32 v%d, v%d, v%d" % (t[3], t[3], t[1]))
    k("v_lshlrev_b32 v%d, 4, v%d" % (t[3], t[3]))
    k("v_lshl_add_u32 v%d, v%d, 7, v%d" % (t[2], t[2], t[3]))
    k("v_and_b32 v%d, 1, v0" % t[3])
    k("v_lshl_add_u32 v%d, v%d, 3, v%d" % (t[2], t[3], t[2]))
    k("v_add_u32 v%d, 0x%x, v%d" % (t[2], XS(5), t[2]))
    k("v_lshrrev_b32 v%d, 4, v0" % t[3])
    k("v_and_b32 v%d, 15, v0" % t[4])
    k("v_lshlrev_b32 v%d, 4, v%d" % (t[4], t[4]))
    k("v_lshl_add_u32 v%d, v%d, 9, v%d" % (t[3], t[3], t[4]))
    k("v_add_u32 v%d, 0x%x, v%d" % (t[3], VIMG, t[3]))
    fA = R.get("fA", 16)
    for ww in range(4):
        k("ds_read_b64_tr_b16 %s, v%d offset:%d" % (vr(fA + 4 * ww, 2), t[2], ww * 4096))
        k("ds_read_b64_tr_b16 %s, v%d offset:%d" % (vr(fA + 4 * ww + 2, 2), t[2], ww * 4096 + 1024))
    vB = R.get("vB", 8)
    for i in range(8):
        k("v_cvt_pk_bf16_f32 v%d, v%d, v%d" % (vB + i, VA + 2 * i, VA + 2 * i + 1))
    exec_set(0xfeffffff, 0xfeffffff)
    k("ds_write_b128 v%d, %s" % (t[0], vr(vB, 4)))
    k("ds_write_b128 v%d, %s offset:1024" % (t[0], vr(vB + 4, 4)))
    exec_all()
    R.rel("VA", "vB")
    k.wait_lg()
    k.barrier()
    fV = R.get("fV", 32)
    for ww in range(4):
        for T in range(2):
            k("ds_read_b128 %s, v%d offset:%d" % (vr(fV + 8 * ww + 4 * T, 4), t[3], ww * 2048 + T * 256))
    kvA = R.get("kvA", 8)
    for ww in range(4):
        for T in range(2):
            k("v_mfma_f32_16x16x32_bf16 %s, %s, %s, %s" % (vr(kvA + 4 * T, 4), vr(fA + 4 * ww, 4),
                                                          vr(fV + 8 * ww + 4 * T, 4),
                                                          "0" if ww == 0 else vr(kvA + 4 * T, 4)))
    k("s_lshl_b32 s%d, s%d, 16" % (st0, sh))
    k("s_lshl_b32 s%d, s%d, 12" % (st1, sr))
    k("s_add_u32 s%d, s%d, s%d" % (st0, st0, st1))
    k("s_add_u32 s%d, s%d, s%d" % (st0, st0, sw1k))
    k("s_add_u32 s%d, s%d, 0x%x" % (st0, st0, KVP))
    k("s_lshl_b32 s%d, s%d, 4" % (st1, sw))
    k("s_add_u32 s%d, s%d, s%d" % (st1, st1, sh))
    k("s_lshl_b32 s%d, s%d, 4" % (st1, st1))
    k("s_add_u32 s%d, s%d, s%d" % (st1, st1, sr))
    k("s_lshl_b32 s%d, s%d, 5" % (st1, st1))
    k("s_add_u32 s%d, s%d, 0x%x" % (st1, st1, FLAG_KV))
    vN = R.get("vN")
    vZero = R.get("vZero")
    k("v_mov_b32 v%d, s%d" % (vN, sN))
    k("v_mov_b32 v%d, 0" % vZero)
    kvP = R.get("kvP", 4)
    for i in range(4):
        k("v_cvt_pk_bf16_f32 v%d, v%d, v%d" % (kvP + i, kvA + 2 * i, kvA + 2 * i + 1))
    k("v_permlane16_swap_b32 v%d, v%d" % (kvP, kvP + 2))
    k("v_permlane16_swap_b32 v%d, v%d" % (kvP + 1, kvP + 3))
    k("buffer_store_dwordx4 %s, v%d, %s, s%d offen sc1" % (vr(kvP, 4), vL16, srd(SWS), st0))
    stamp()
    k.waitcnt(vm=0)
    exec_set(1, 0)
    k("buffer_store_dword v%d, v%d, %s, s%d offen sc1" % (vN, vZero, srd(SWS), st1))
    exec_all()
    stamp()
    R.rel("fA", "fV", "kvA", "kvP")
    k("s_mul_i32 s%d, s%d, 37" % (st0, sidx))
    k("s_lshr_b32 s%d, s%d, 8" % (st0, st0))
    k("s_mul_i32 s%d, s%d, 7" % (st1, st0))
    k("s_sub_u32 s%d, s%d, s%d" % (sj, sidx, st1))
    k("s_and_b32 s%d, s2, 7" % st1)
    k("s_lshl2_add_u32 s%d, s%d, s%d" % (st1_, st1, st0))
    k("s_lshr_b32 s%d, s%d, 1" % (sp, sw))
    k("s_and_b32 s%d, s%d, 1" % (su, sw))
    k("s_lshl_b32 s%d, s%d, 5" % (ss2g, sp))
    k("s_add_u32 s%d, s%d, s%d" % (ss2g, ss2g, st1_))
    k("s_cmp_ge_u32 s%d, 28" % sidx)
    k("s_cbranch_scc1 .Lnowo")
    with k.cond_block():
        wv = R.get("wv", 6)
        k("v_lshrrev_b32 v%d, 3, v0" % t[0])
        k("v_bfe_u32 v%d, v0, 4, 1" % t[1])
        k("v_lshlrev_b32 v%d, 1, v%d" % (t[1], t[1]))
        k("v_xor_b32 v%d, v%d, v0" % (t[1], t[1]))
        k("v_and_b32 v%d, 7, v%d" % (t[1], t[1]))
        k("v_lshlrev_b32 v%d, 4, v%d" % (t[1], t[1]))
        k("s_movk_i32 s%d, 896" % st0)
        k("v_mad_u32_u24 v%d, v%d, s%d, v%d" % (wv + 2, t[0], st0, t[1]))
        k("s_movk_i32 s%d, %d" % (st1, 4 * 896))
        k("v_mad_u32_u24 v%d, v%d, s%d, v%d" % (wv, vHf, st1, wv + 2))
        k("s_movk_i32 s%d, %d" % (st1, 24 * 896))
        k("v_mad_u32_u24 v%d, v%d, s%d, v%d" % (wv + 4, vHf, st1, wv + 2))
        for b in (0, 2, 4):
            k("v_xor_b32 v%d, 64, v%d" % (wv + b + 1, wv + b))
        k("s_mul_i32 s%d, s%d, %d" % (st0, sw, 4 * 28 * 896))
        k("s_lshl_b32 s%d, s%d, 7" % (st1, sj))
        k("s_add_u32 s%d, s%d, s%d" % (st0, st0, st1))
        k("s_mul_i32 s%d, s%d, 12288" % (st1, sw))
        k("s_add_u32 s%d, s%d, 0x%x" % (st1, st1, WK))
        for i in range(4):
            for ty in range(3):
                par = (i + ty) & 1
                k("s_add_u32 m0, s%d, %d" % (st1, (3 * i + ty) * 1024))
                k("s_add_u32 s%d, s%d, %d" % (st2, st0, (28 * i + (0, 4, 20)[ty]) * 896))
                k("buffer_load_dwordx4 v%d, %s, s%d offen lds" % (wv + (2 if ty == 2 else 0) + par, srd(SWO), st2),
                  tag="wo")
        k("s_lshl_b32 s%d, s%d, 11" % (st1, sw))
        for i in range(2):
            k("s_add_u32 m0, s%d, %d" % (st1, WK + 48 * 1024 + i * 1024))
            k("s_add_u32 s%d, s%d, %d" % (st2, st0, (56 * i + 16) * 896))
            k("buffer_load_dwordx4 v%d, %s, s%d offen lds" % (wv + 4 + i, srd(SWO), st2), tag="wo")
        R.rel("wv")
    k.label(".Lnowo")
    k.barrier()
    QT = R.get("QT", 16)
    k("v_add_u32 v%d, 0x%x, v%d" % (vWr0, XS(3), vWr0))
    wgemm(QT, vWr0, 0, range(7), False, True)
    PQ = R.get("PQ", 16)
    phi_proj(QT, vPQ, PQ)
    R.rel("QT", "vPQ", "fW", "vWr0", "vWk", "vWq")
    PHQ = R.get("PHQ", 16)
    softmax(PQ, PHQ)
    R.rel("PQ")
    stamp()
    k("s_lshl_b32 s%d, s%d, 4" % (st1, sw))
    k("s_add_u32 s%d, s%d, s%d" % (st1, st1, shq))
    k("s_lshl_b32 s%d, s%d, 9" % (st1, st1))
    k("s_add_u32 s%d, s%d, 0x%x" % (st1, st1, FLAG_KV))
    k("v_and_b32 v%d, 15, v0" % t[0])
    k("v_lshl_add_u32 v%d, v%d, 5, s%d" % (t[0], t[0], st1))
    k("s_lshl_b32 s%d, s%d, 16" % (st0, shq))
    k("s_add_u32 s%d, s%d, s%d" % (st0, st0, sw1k))
    k("s_add_u32 s%d, s%d, 0x%x" % (st0, st0, KVP))
    poll(t[0], t[1], "a")
    stamp()
    LD = R.get("LD", 64)
    for rr in range(16):
        k("buffer_load_dwordx4 %s, v%d, %s, s%d offen sc1" % (vr(LD + 4 * rr, 4), vL16, srd(SWS), st0))
        if rr < 15:
            k("s_add_u32 s%d, s%d, 0x1000" % (st0, st0))
    AC = R.get("AC", 8)
    k("s_mov_b32 s%d, 0x00003f80" % sc0)
    k("s_mov_b32 s%d, 0x3f800000" % sc1_)
    for i in range(4):
        k("v_lshlrev_b32 v%d, 16, v%d" % (AC + 2 * i, LD + i))
        k("v_and_b32 v%d, 0xffff0000, v%d" % (AC + 2 * i + 1, LD + i))
    for rr in range(1, 16):
        for i in range(4):
            k("v_dot2c_f32_bf16 v%d, s%d, v%d" % (AC + 2 * i, sc0, LD + 4 * rr + i))
            k("v_dot2c_f32_bf16 v%d, s%d, v%d" % (AC + 2 * i + 1, sc1_, LD + 4 * rr + i))
    k("s_add_u32 s%d, s%d, 3072" % (st0, sw4k))
    k("v_add_u32 v%d, s%d, v%d" % (t[0], st0, vL16))
    fK = R.get("fK", 16)
    for i in range(4):
        k("v_cvt_pk_bf16_f32 v%d, v%d, v%d" % (fK + i, AC + 2 * i, AC + 2 * i + 1))
    k("ds_write_b128 v%d, %s" % (t[0], vr(fK, 4)))
    R.rel("LD", "AC")
    k("s_mul_i32 s%d, s%d, %d" % (st0, ss2, 2 * 14336))
    k("s_add_u32 s%d, s%d, 0x%x" % (st0, st0, OOFF))
    k("s_mul_i32 s%d, s%d, 768" % (st1, shq))
    k("s_add_u32 s%d, s%d, s%d" % (st1, st1, st0))
    k("s_lshl_b32 s%d, s%d, 7" % (st2, shq))
    k("s_add_u32 s%d, s%d, s%d" % (st2, st2, st0))
    k("s_add_u32 s%d, s%d, 12288" % (st2, st2))
    k("v_bfe_u32 v%d, v0, 4, 1" % t[1])
    k("v_mul_u32_u24 v%d, 0x%x, v%d" % (t[1], 14336, t[1]))
    k("v_and_b32 v%d, 15, v0" % t[2])
    k("v_lshl_add_u32 v%d, v%d, 3, v%d" % (t[3], t[2], t[1]))
    k("v_lshl_add_u32 v%d, v%d, 4, v%d" % (t[2], t[2], t[1]))
    k("v_lshl_add_u32 v%d, v%d, 8, v%d" % (t[2], vHf, t[2]))
    k("s_lshl_b32 s%d, s%d, 4" % (st3, ss2))
    k("s_add_u32 s%d, s%d, s%d" % (st3, st3, shq))
    k("s_lshl_b32 s%d, s%d, 5" % (st3, st3))
    k("s_add_u32 s%d, s%d, 0x%x" % (st3, st3, FLAG_O))
    k("v_sub_f32 v%d, 1.0, v%d" % (vG, vG))
    k.wait_lg()
    k.barrier()
    for ks in range(4):
        k("ds_read_b128 %s, v%d offset:%d" % (vr(fK + 4 * ks, 4), vL16, ks * 4096 + 3072))
    OT = R.get("OT", 16)
    for ks in range(4):
        k("v_mfma_f32_32x32x16_bf16 %s, %s, %s, %s" % (vr(OT, 16), vr(fK + 4 * ks, 4), vr(PHQ + 4 * ks, 4),
                                                      "0" if ks == 0 else vr(OT, 16)))
    k("v_mov_b32 v%d, v%d" % (t[4], OT + 12))
    k("v_permlane32_swap_b32 v%d, v%d" % (t[4], OT + 12))
    k("v_add_f32 v%d, %s, v%d" % (t[4], fl(1e-6), t[4]))
    k("v_rcp_f32 v%d, v%d" % (t[4], t[4]))
    k("v_mul_f32 v%d, v%d, v%d" % (t[4], t[4], vG))
    oP = R.get("oP", 8)
    for i in range(8):
        k("v_mul_f32 v%d, v%d, v%d" % (OT + 2 * i, OT + 2 * i, t[4]))
        k("v_mul_f32 v%d, v%d, v%d" % (OT + 2 * i + 1, OT + 2 * i + 1, t[4]))
        k("v_cvt_pk_bf16_f32 v%d, v%d, v%d" % (oP + i, OT + 2 * i, OT + 2 * i + 1))
        if i == 3:
            k("buffer_store_dwordx4 %s, v%d, %s, s%d offen sc1" % (vr(oP, 4), t[2], srd(SWS), st1))
    exec_set(0, 0xffffffff)
    k("buffer_store_dwordx4 %s, v%d, %s, s%d offen offset:256 sc1" % (vr(oP + 4, 4), t[2], srd(SWS), st1))
    exec_set(0xffffffff, 0)
    k("buffer_store_dwordx2 %s, v%d, %s, s%d offen sc1" % (vr(oP + 4, 2), t[3], srd(SWS), st2))
    stamp()
    k.waitcnt(vm=0)
    exec_set(1, 0)
    k("buffer_store_dword v%d, v%d, %s, s%d offen sc1" % (vN, vZero, srd(SWS), st3))
    exec_all()
    stamp()
    R.rel("OT", "oP", "fK", "PHQ", "vG")
    k("s_cmp_ge_u32 s%d, 28" % sidx)
    k("s_cbranch_scc1 .Lfin")
    k("s_lshl_b32 s%d, s%d, 6" % (st0, sj))
    k("s_lshl_b32 s%d, s%d, 4" % (st1, sw))
    k("s_add_u32 s%d, s%d, s%d" % (st0, st0, st1))
    k("s_sub_u32 s%d, 32, s%d" % (st1, st1_))
    k("s_and_b32 s%d, s%d, 31" % (st1, st1))
    k("s_sub_u32 s%d, 448, s%d" % (st2, st0))
    k("s_cmp_ge_u32 s%d, 224" % st0)
    k("s_cselect_b32 s%d, s%d, s%d" % (stz, st1, st1_))
    k("s_cselect_b32 s%d, s%d, s%d" % (st0, st2, st0))
    k("s_cselect_b32 s%d, -1, 1" % smir)
    k("s_movk_i32 s%d, 4682" % st3)

    def head_of(dst, e):
        k("v_mul_u32_u24 v%d, s%d, v%d" % (dst, st3, e))
        k("v_lshrrev_b32 v%d, 16, v%d" % (dst, dst))
        k("v_min_u32 v%d, 15, v%d" % (dst, dst))

    k("v_lshrrev_b32 v%d, 4, v0" % t[0])
    k("v_and_b32 v%d, 15, v0" % t[1])
    k("v_lshlrev_b32 v%d, 3, v%d" % (t[2], t[0]))
    k("v_min_u32 v%d, 15, v%d" % (t[2], t[2]))
    k("v_mul_i32_i24 v%d, s%d, v%d" % (t[2], smir, t[2]))
    k("v_add_u32 v%d, s%d, v%d" % (t[2], st0, t[2]))
    head_of(t[3], t[2])
    k("s_lshr_b32 s%d, s%d, 3" % (st1, stz))
    k("s_lshl_b32 s%d, s%d, 13" % (st1, st1))
    k("s_add_u32 s%d, s%d, 0x%x" % (st1, st1, FLAG_KV))
    k("v_lshl_add_u32 v%d, v%d, 4, v%d" % (t[3], t[3], t[1]))
    k("v_lshl_add_u32 v%d, v%d, 5, s%d" % (t[3], t[3], st1))
    k("s_and_b32 s%d, s%d, 3" % (st1, ss2g))
    k("s_lshl_b32 s%d, s%d, 8" % (st1, st1))
    k("s_lshr_b32 s%d, s%d, 2" % (st2, ss2g))
    k("s_add_u32 s%d, s%d, s%d" % (st1, st1, st2))
    k("s_lshl_b32 s%d, s%d, 5" % (st1, st1))
    k("s_add_u32 s%d, s%d, 0x%x" % (st1, st1, FLAG_KV))
    exec_set(0, 0xffff0000)
    k("v_mov_b32 v%d, s%d" % (t[3], st1))
    exec_all()
    k("v_mul_i32_i24 v%d, s%d, v%d" % (t[2], smir, t[1]))
    k("v_add_u32 v%d, s%d, v%d" % (t[2], st0, t[2]))
    head_of(t[4], t[2])
    k("v_lshl_add_u32 v%d, v%d, 1, v%d" % (t[2], t[4], t[2]))
    k("v_lshlrev_b32 v%d, 4, v%d" % (t[2], t[2]))
    k("v_lshl_add_u32 v%d, v%d, 12, v%d" % (t[2], t[0], t[2]))
    k("s_lshl_b32 s%d, s%d, 16" % (st0, stz))
    k("s_add_u32 s%d, s%d, 0x%x" % (st0, st0, ZOFF))
    poll(t[3], t[4], "z")
    ZF = R.get("ZF", 64)
    for kk in range(4):
        k("buffer_load_dwordx4 %s, v%d, %s, s%d offen sc1" % (vr(ZF + 4 * kk, 4), t[2], srd(SWS), st0))
        if kk < 3:
            k("s_add_u32 s%d, s%d, 0x4000" % (st0, st0))
    vG2 = R.get("vG2")
    k("s_lshl_b32 s%d, s%d, 7" % (st0, ss2g))
    k("s_lshl_b32 s%d, s%d, 6" % (st1, su))
    k("s_add_u32 s%d, s%d, s%d" % (st0, st0, st1))
    k("s_add_u32 s%d, s%d, 0x%x" % (st0, st0, GOFF))
    k("v_lshlrev_b32 v%d, 2, v%d" % (t[4], t[1]))
    k("buffer_load_dword v%d, v%d, %s, s%d offen sc1" % (vG2, t[4], srd(SWS), st0))
    Wm = R.get("Wm", 32)
    k("s_lshl_b32 s%d, s%d, 5" % (st0, su))
    k("s_add_u32 s%d, s%d, s%d" % (st0, st0, sp))
    k("v_lshl_add_u32 v%d, v%d, 1, s%d" % (t[2], t[1], st0))
    k("s_cmp_lg_u32 s%d, 0" % st1_)
    k("s_cselect_b32 s%d, 1, 0" % st1)
    k("v_add_u32 v%d, s%d, v%d" % (t[3], st1, t[2]))
    k("v_cvt_f32_u32 v%d, v%d" % (t[2], t[2]))
    k("v_cvt_f32_u32 v%d, v%d" % (t[3], t[3]))
    k("v_mul_f32 v%d, %s, v%d" % (t[2], fl(1.0 / 64), t[2]))
    k("v_mul_f32 v%d, %s, v%d" % (t[3], fl(-1.0 / 64), t[3]))
    k("v_lshlrev_b32 v%d, 2, v%d" % (t[4], t[0]))
    k("v_cvt_f32_u32 v%d, v%d" % (t[4], t[4]))
    vS = R.get("vS", 2)
    for st in range(2):
        k("s_cmp_ge_u32 s%d, %d" % (sj, 4 - st))
        k("s_cselect_b64 vcc, -1, 0")
        k("v_cndmask_b32 v%d, v%d, v%d, vcc" % (vS, t[2], t[3]))
        k("v_mul_f32 v%d, v%d, v%d" % (vS + 1, vS, t[4]))
        for kk in range(4):
            for w in range(4):
                k("v_fmamk_f32 v%d, v%d, %s, v%d" % (t[5], vS, fl(16 * kk + w), vS + 1))
                k("v_cos_f32 v%d, v%d" % (t[6], t[5]))
                k("v_sin_f32 v%d, v%d" % (t[7], t[5]))
                k("v_cvt_pk_bf16_f32 v%d, v%d, v%d" % (Wm + 16 * st + 4 * kk + w, t[6], t[7]))
        if st == 0:
            k("s_add_u32 s%d, s%d, 0x%x" % (st0, sw4k, XS(1)))
            k("v_add_u32 v%d, s%d, v%d" % (t[5], st0, vL16))
            for kk in range(4):
                k("ds_write_b128 v%d, %s offset:%d" % (t[5], vr(ZF + 4 * kk, 4), kk * 1024))
    R.rel("vS")
    k.wait_lg()
    k.barrier()
    for ct in range(4):
        for kk in range(4):
            k("ds_read_b128 %s, v%d offset:%d" % (vr(ZF + 16 * ct + 4 * kk, 4), vL16, XS(1) + ct * 4096 + kk * 1024))
    wa = R.get("wa", 4)
    k("v_bfe_u32 v%d, v0, 2, 2" % t[2])
    k("v_lshlrev_b32 v%d, 7, v%d" % (t[2], t[2]))
    k("v_lshl_add_u32 v%d, v%d, 10, v%d" % (t[2], t[0], t[2]))
    k("v_and_b32 v%d, 3, v0" % t[3])
    k("v_lshl_add_u32 v%d, v%d, 3, v%d" % (t[2], t[3], t[2]))
    k("v_bfe_u32 v%d, v0, 3, 2" % t[3])
    k("v_lshl_add_u32 v%d, v%d, 5, v%d" % (t[2], t[3], t[2]))
    k("v_add_u32 v%d, 0x%x, v%d" % (wa, WK, t[2]))
    for ct in range(1, 4):
        k("v_xor_b32 v%d, %d, v%d" % (wa + ct, 32 * ct, wa))
    Y = R.get("Y", 16)
    for kk in range(4):
        for ct in range(4):
            k("v_mfma_f32_16x16x32_bf16 %s, %s, %s, %s" % (vr(Y + 4 * ct, 4), vr(ZF + 16 * ct + 4 * kk, 4),
                                                          vr(Wm + 16 * (ct >> 1) + 4 * kk, 4),
                                                          "0" if kk == 0 else vr(Y + 4 * ct, 4)))
    for kk in range(14):
        for ct in range(4):
            b = (kk * 4 + ct) * 4
            k("ds_read_b64_tr_b16 %s, v%d offset:%d" % (ar(b, 2), wa + ct, kk * 4096))
            k("ds_read_b64_tr_b16 %s, v%d offset:%d" % (ar(b + 2, 2), wa + ct, kk * 4096 + 512))
    for i in range(16):
        k("v_mul_f32 v%d, v%d, v%d" % (Y + i, Y + i, vG2))
    R.rel("ZF", "Wm", "wa", "vG2")
    k("s_lshl_b32 s%d, s%d, 9" % (st0, ss2g))
    k("s_add_u32 s%d, s%d, 0x%x" % (st0, st0, FLAG_O))
    k("v_lshl_add_u32 v%d, v%d, 5, s%d" % (t[2], t[1], st0))
    k("s_lshl1_add_u32 s%d, s%d, s%d" % (st0, ss2g, su))
    k("s_mul_i32 s%d, s%d, 14336" % (st0, st0))
    k("s_add_u32 s%d, s%d, 0x%x" % (st0, st0, OOFF))
    k("s_add_u32 s%d, s%d, 4096" % (st1, st0))
    k("s_add_u32 s%d, s%d, 8192" % (st2, st0))
    k("s_add_u32 s%d, s%d, 12288" % (st3, st0))
    k("v_lshlrev_b32 v%d, 3, v%d" % (t[3], t[1]))
    k("v_lshl_add_u32 v%d, v%d, 8, v%d" % (t[3], t[0], t[3]))
    stamp()
    poll(t[2], t[4], "o")
    stamp()
    OF = R.get("OF", 56)
    for kk in range(12):
        k("buffer_load_dwordx4 %s, v%d, %s, s%d offen offset:%d sc1" % (vr(OF + 4 * kk, 4), vL16, srd(SWS),
                                                                       (st0, st1, st2)[kk >> 2], (kk & 3) * 1024))
    for mk in range(2):
        for e in range(2):
            k("buffer_load_dwordx2 %s, v%d, %s, s%d offen offset:%d sc1" % (vr(OF + 48 + 4 * mk + 2 * e, 2), t[3],
                                                                           srd(SWS), st3, mk * 1024 + e * 128))
    k("s_or_b32 s%d, s2, s%d" % (st0, sw))
    k("s_cmp_lg_u32 s%d, 0" % st0)
    k("s_cbranch_scc1 .Lnoe")
    with k.cond_block():
        exec_set(1, 0)
        k("buffer_store_dword v%d, v%d, %s, 0 offen sc1" % (vN, vZero, srd(SWS)))
        exec_all()
    k.label(".Lnoe")
    k("s_lshl_b32 s%d, s%d, 10" % (st0, su))
    k("s_add_u32 s%d, s%d, s%d" % (st0, st0, ss2g))
    k("s_mul_i32 s%d, s%d, 896" % (st0, st0))
    k("s_lshl_b32 s%d, s%d, 7" % (st1, sj))
    k("s_add_u32 s%d, s%d, s%d" % (st0, st0, st1))
    k("v_mul_u32_u24 v%d, 0x%x, v%d" % (t[2], 57344, t[1]))
    k("v_lshl_add_u32 v%d, v%d, 4, v%d" % (t[2], vHf, t[2]))
    k("v_bfe_u32 v%d, v0, 4, 1" % t[4])
    k("v_lshl_add_u32 v%d, v%d, 5, v%d" % (t[2], t[4], t[2]))
    for kk in range(14):
        for ct in range(4):
            k("v_mfma_f32_16x16x32_bf16 %s, %s, %s, %s" % (vr(Y + 4 * ct, 4), ar((kk * 4 + ct) * 4, 4),
                                                          vr(OF + 4 * kk, 4), vr(Y + 4 * ct, 4)))
    fP = R.get("fP", 8)
    for half in range(2):
        for i in range(4):
            k("v_cvt_pk_bf16_f32 v%d, v%d, v%d" % (fP + 4 * half + i, Y + 8 * half + 2 * i, Y + 8 * half + 2 * i + 1))
        k("v_permlane16_swap_b32 v%d, v%d" % (fP + 4 * half, fP + 4 * half + 2))
        k("v_permlane16_swap_b32 v%d, v%d" % (fP + 4 * half + 1, fP + 4 * half + 3))
        k("buffer_store_dwordx4 %s, v%d, %s, s%d offen offset:%d" % (vr(fP + 4 * half, 4), t[2], srd(SOUT), st0,
                                                                    64 * half))
    stamp()
    k.label(".Lfin")
    if ts:
        k.raw("    s_waitcnt vmcnt(0) lgkmcnt(0)")
        k.raw("    s_memtime s[2:3]")
        k.raw("    s_waitcnt lgkmcnt(0)")
        k.raw("    s_lshl2_add_u32 s%d, s%d, s%d" % (st0, sr, sw))
        k.raw("    s_lshl_b32 s%d, s%d, 6" % (st1, sh))
        k.raw("    s_add_u32 s%d, s%d, s%d" % (st0, st0, st1))
        k.raw("    s_lshl_b32 s%d, s%d, 7" % (st0, st0))
        k.raw("    s_add_u32 s%d, s%d, 0x%x" % (st0, st0, TSOFF))
        k.raw("    s_mov_b64 exec, 1")
        k.raw("    v_mov_b32 v1, 0")
        for i in range(nts[0]):
            k.raw("    v_mov_b32 v2, s%d" % (TS0 + 2 * i))
            k.raw("    buffer_store_dword v2, v1, %s, s%d offen offset:%d" % (srd(SWS), st0, 4 * i))
        k.raw("    v_mov_b32 v2, s2")
        k.raw("    buffer_store_dword v2, v1, %s, s%d offen offset:%d" % (srd(SWS), st0, 4 * nts[0]))
        k.raw("    s_waitcnt vmcnt(0)")
    k.label(".Lend")
    k.raw("    s_endpgm")
    body = k.text()
    return body, R.high, k


def build(path, **kw):
    body, high, k = gen(**kw)
    import subprocess, os
    lab = KNAME + "_kernel"

    def mk(pf):
        return wrap([(lab, body.replace("CODE_PF_MAX", "0x%x" % pf), 256, 256, 102)], [(lab, 256, 256, 163840)])

    open(path, "w").write(mk(0x1000))
    sys.path.insert(0, "cdna_kernels")
    import cdna_launch as L
    h = L.with_harness_metadata(open(path).read(), lab, 13, launch_lists=True)
    open("_g.s", "w").write(h)
    r = subprocess.run(["clang", "-x", "assembler", "-target", "amdgcn-amd-amdhsa", "-mcpu=gfx950",
                        "-c", "_g.s", "-o", "_g.o"], capture_output=True, text=True)
    assert r.returncode == 0, r.stderr
    r = subprocess.run(["llvm-objdump", "-d", "_g.o"], capture_output=True, text=True)
    lines = [l for l in r.stdout.split("\n") if "//" in l]
    addr = lambda l: int(l.split("//")[1].split(":")[0], 16)
    end = addr(lines[-1]) + 4
    pc = [addr(l) + 4 for l in lines if "s_getpc" in l]
    pf = 0
    if pc:
        pf = end - pc[0] - 128
        pf -= pf % 4
    open(path, "w").write(mk(pf))
    print(path, "instrs", k.count, "nops", k.nops, "vgpr high", high, "code bytes", end)


if __name__ == "__main__":
    build("k_ts.s", ts=True)
    build("k.s", ts=False)
```

```python
import sys, struct
from asmlib import *

XS = lambda i: 16384 * i
WK = 98304
HH = 126976
VIMG = 155648
FLAG_KV = 0x1000
FLAG_O = 0x10000
GOFF = 0x20000
KVP = 0x100000
ZOFF = 0x200000
OOFF = 0x400000
TSOFF = 0x800000
WS_SIZE = 0x1000000
LOG2E = 1.4426950408889634


def fl(x):
    return "0x%08x" % struct.unpack("<I", struct.pack("<f", x))[0]


class RA:
    def __init__(self, lo, hi):
        self.free = [True] * 256
        for i in range(256):
            if i < lo or i >= hi:
                self.free[i] = False
        self.names = {}
        self.high = 0

    def get(self, name, n=1, al=None):
        al = al or (4 if n >= 4 else (2 if n >= 2 else 1))
        for b in range(0, 256, al):
            if b + n <= 256 and all(self.free[b:b + n]):
                for i in range(b, b + n):
                    self.free[i] = False
                self.names[name] = (b, n)
                self.high = max(self.high, b + n)
                return b
        raise RuntimeError("out of vgprs for " + name)

    def rel(self, *names):
        for name in names:
            b, n = self.names.pop(name)
            for i in range(b, b + n):
                self.free[i] = True


def vr(b, n):
    return "v[%d:%d]" % (b, b + n - 1)


def ar(b, n):
    return "a[%d:%d]" % (b, b + n - 1)


SX, SW, SPHI, SWO, SG, SOUT, SWS = 4, 8, 12, 16, 20, 24, 28
sw, sr, sh, shq, srot, sN = 32, 33, 34, 35, 36, 37
st0, st1, st2, st3 = 38, 39, 47, 55
SOX = 40
SOW = 48
sw4k, sw1k, ss2 = 56, 57, 58
st1_, sj, sp, su, ss2g, sidx = 59, 60, 61, 62, 63, 64
sc0, sc1_ = 65, 66
scnt = 67
smir, stz = 68, 69
TS0 = 70


def srd(b):
    return "s[%d:%d]" % (b, b + 3)


def gen(ts=False, stop=None, opts=None):
    o = dict(codepf=1)
    o.update(opts or {})
    k = K()
    R = RA(1, 256)
    nts = [0]

    def stamp():
        if ts:
            i = nts[0]
            nts[0] += 1
            assert TS0 + 2 * i + 1 <= 101
            k("s_memtime s[%d:%d]" % (TS0 + 2 * i, TS0 + 2 * i + 1))

    def exec_set(lo, hi):
        k("s_mov_b32 exec_lo, 0x%x" % lo)
        k("s_mov_b32 exec_hi, 0x%x" % hi)

    def exec_all():
        k("s_mov_b64 exec, -1")

    def poll(vaddr, vtmp, name):
        k("s_mov_b32 s%d, 0x20000" % scnt)
        lab = k.newlabel("Lp" + name)
        done = k.newlabel("Ld" + name)
        k.waitcnt(lgkm=0)
        k.label(lab)
        k("buffer_load_dword v%d, v%d, %s, 0 offen sc1" % (vtmp, vaddr, srd(SWS)), nowait=True)
        k.waitcnt(vm=0)
        k("v_cmp_ne_u32 vcc, s%d, v%d" % (sN, vtmp))
        k("s_cbranch_vccz %s" % done)
        k("s_sub_u32 s%d, s%d, 1" % (scnt, scnt))
        k("s_cbranch_scc0 %s" % lab)
        k.label(done)

    k("s_cmp_ge_u32 s2, 0x100")
    k("s_cbranch_scc1 .Lend")
    if ts:
        k("s_memrealtime s[%d:%d]" % (TS0, TS0 + 1))
        nts[0] = 1
        stamp()
    k("s_load_dwordx2 s[%d:%d], s[0:1], 0" % (SX, SX + 1))
    k("s_load_dwordx2 s[%d:%d], s[0:1], 48" % (SW, SW + 1))
    k("s_load_dwordx2 s[%d:%d], s[0:1], 56" % (SPHI, SPHI + 1))
    k("s_load_dwordx2 s[%d:%d], s[0:1], 72" % (SG, SG + 1))
    k("s_load_dwordx2 s[%d:%d], s[0:1], 96" % (SWS, SWS + 1))
    k("s_load_dwordx2 s[%d:%d], s[0:1], 64" % (SWO, SWO + 1))
    k("s_load_dwordx2 s[%d:%d], s[0:1], 80" % (SOUT, SOUT + 1))
    t = [R.get("t%d" % i) for i in range(8)]
    k("v_lshrrev_b32 v%d, 6, v0" % t[0])
    k("v_and_b32 v0, 63, v0")
    k("v_readfirstlane_b32 s%d, v%d" % (sw, t[0]))
    k("s_lshr_b32 s%d, s2, 3" % sidx)
    k("s_and_b32 s%d, s2, 3" % sr)
    k("s_and_b32 s%d, s%d, 3" % (st1, sidx))
    k("s_lshl2_add_u32 s%d, s%d, s%d" % (sr, st1, sr))
    k("s_lshr_b32 s%d, s2, 5" % sh)
    k("s_lshl1_add_u32 s%d, s%d, s%d" % (srot, st1, sh))
    k("s_and_b32 s%d, s2, 4" % st1)
    k("s_lshl1_add_u32 s%d, s%d, s%d" % (sh, st1, sh))
    k("s_xor_b32 s%d, s%d, 1" % (shq, sh))
    k("s_cmp_ge_u32 s%d, 7" % srot)
    k("s_cselect_b32 s%d, 7, 0" % st1)
    k("s_sub_u32 s%d, s%d, s%d" % (srot, srot, st1))
    k("s_lshl2_add_u32 s%d, s%d, s%d" % (ss2, sr, sw))
    k("s_lshl_b32 s%d, s%d, 12" % (sw4k, sw))
    k("s_lshl_b32 s%d, s%d, 10" % (sw1k, sw))
    vX = R.get("vX", 4)
    k("v_lshrrev_b32 v%d, 3, v0" % t[0])
    k("v_lshrrev_b32 v%d, 4, v0" % t[1])
    k("v_xor_b32 v%d, v%d, v0" % (t[2], t[1]))
    k("v_and_b32 v%d, 7, v%d" % (t[2], t[2]))
    k("v_mul_u32_u24 v%d, 0x%x, v%d" % (t[0], 57344, t[0]))
    k("s_mul_i32 s%d, s%d, 896" % (st0, ss2))
    k("v_lshl_add_u32 v%d, v%d, 4, v%d" % (t[0], t[2], t[0]))
    k("v_add_u32 v%d, s%d, v%d" % (vX, st0, t[0]))
    dq = 8 * 57344 - 1024
    k("s_mov_b32 s%d, 0x%x" % (st1, dq))
    k("v_xad_u32 v%d, v%d, 64, s%d" % (vX + 1, vX, st1))
    k("v_add_u32 v%d, 0x%x, v%d" % (vX + 2, 2 * dq, vX))
    k("v_add_u32 v%d, 0x%x, v%d" % (vX + 3, 2 * dq, vX + 1))
    vWk = R.get("vWk")
    vWq = R.get("vWq")
    k("v_lshrrev_b32 v%d, 2, v0" % t[0])
    k("v_and_b32 v%d, 3, v0" % t[3])
    k("v_lshlrev_b32 v%d, 4, v%d" % (t[3], t[3]))
    k("v_min_u32 v%d, 40, v%d" % (t[3], t[3]))
    k("s_movk_i32 s%d, 2688" % st1)
    k("v_mad_u32_u24 v%d, v%d, s%d, v%d" % (t[0], t[0], st1, t[3]))
    k("s_mul_i32 s%d, s%d, %d" % (st0, sw, 16 * 2688))
    k("s_mul_i32 s%d, s%d, 56" % (st1, sh))
    k("s_add_u32 s%d, s%d, s%d" % (st1, st1, st0))
    k("s_add_u32 s%d, s%d, 896" % (st1, st1))
    k("v_add_u32 v%d, s%d, v%d" % (vWk, st1, t[0]))
    k("s_mul_i32 s%d, s%d, 56" % (st1, shq))
    k("s_add_u32 s%d, s%d, s%d" % (st1, st1, st0))
    k("v_add_u32 v%d, s%d, v%d" % (vWq, st1, t[0]))
    k("s_mov_b32 s%d, s%d" % (st0, srot))
    for c in range(7):
        k("s_lshl_b32 s%d, s%d, 7" % (SOX + c, st0))
        k("s_mul_i32 s%d, s%d, %d" % (SOW + c, st0, 64 * 2688))
        if c < 6:
            k("s_add_u32 s%d, s%d, 1" % (st0, st0))
            k("s_cmp_eq_u32 s%d, 7" % st0)
            k("s_cselect_b32 s%d, 0, s%d" % (st0, st0))
    k("s_and_b32 s%d, s%d, 14" % (st0, sh))
    k("s_mul_i32 s%d, s%d, 1568" % (st0, st0))
    k("s_add_u32 s%d, s%d, s%d" % (st0, st0, sw1k))
    k("v_lshl_add_u32 v%d, v0, 4, s%d" % (t[4], st0))
    k("v_lshrrev_b32 v%d, 1, v0" % t[5])
    k("v_add_u32 v%d, s%d, v%d" % (t[6], srot, t[5]))
    k("v_subrev_u32 v%d, 7, v%d" % (t[7], t[6]))
    k("v_min_u32 v%d, v%d, v%d" % (t[6], t[6], t[7]))
    k("v_and_b32 v%d, 1, v0" % t[7])
    k("v_lshlrev_b32 v%d, 4, v%d" % (t[0], t[7]))
    k("v_lshl_add_u32 v%d, v%d, 7, v%d" % (t[6], t[6], t[0]))
    k("s_lshl_b32 s%d, s%d, 5" % (st0, sw))
    for b, n in ((SX, 2048 * 896), (SW, 448 * 2688), (SPHI, 16 * 1568), (SG, 896), (SWS, WS_SIZE), (SWO, 448 * 896),
                 (SOUT, 2048 * 896)):
        k("s_mov_b32 s%d, 0x%x" % (b + 2, n))
        k("s_mov_b32 s%d, 0x20000" % (b + 3))
    k.waitcnt(lgkm=0)

    def xdma(c):
        slot = c % 6
        k("s_add_u32 m0, s%d, 0x%x" % (sw4k, XS(slot)))
        for q in range(4):
            k("buffer_load_dwordx4 v%d, %s, s%d offen offset:%d lds" % (vX + q, srd(SX), SOX + c, q * 1024),
              tag="x%d" % c)

    def kdma(c):
        k("s_add_u32 m0, s%d, 0x%x" % (sw1k, WK + c * 4096))
        k("buffer_load_dwordx4 v%d, %s, s%d offen lds" % (vWk, srd(SW), SOW + c), tag="x%d" % c)

    def vdma(c):
        k("s_add_u32 m0, s%d, 0x%x" % (sw4k, XS(1 + c // 4) + (c % 4) * 1024 - 896))
        k("buffer_load_dwordx4 v%d, %s, s%d offen offset:896 lds" % (vWk, srd(SW), SOW + c), tag="v%d" % c)

    def qdma(c):
        k("s_add_u32 m0, s%d, 0x%x" % (sw4k, XS(3 + c // 4) + (c % 4) * 1024))
        k("buffer_load_dwordx4 v%d, %s, s%d offen lds" % (vWq, srd(SW), SOW + c), tag="q%d" % c)

    vGate = R.get("vGate", 4)
    k("s_load_dword s%d, s[%d:%d], 0" % (sN, SWS, SWS + 1))
    xdma(0)
    kdma(0)
    k("s_add_u32 m0, s%d, 0x%x" % (sw1k, XS(5)))
    k("buffer_load_dwordx4 v%d, %s, 0 offen lds" % (t[4], srd(SPHI)), tag="x0")
    k("buffer_load_dwordx4 %s, v%d, %s, s%d offen" % (vr(vGate, 4), t[6], srd(SG), st0))
    xdma(1)
    kdma(1)
    if o["codepf"]:
        k("s_getpc_b64 s[%d:%d]" % (st0, st1))
        k("s_lshl2_add_u32 s%d, s%d, s%d" % (st2, sidx, sw))
        k("s_lshl_b32 s%d, s%d, 7" % (st2, st2))
        k("s_min_u32 s%d, s%d, CODE_PF_MAX" % (st2, st2))
        k("v_and_b32 v%d, 31, v0" % t[0])
        k("v_lshl_add_u32 v%d, v%d, 2, s%d" % (t[0], t[0], st2))
        vpf = R.get("vpf")
        k("global_load_dword v%d, v%d, s[%d:%d]" % (vpf, t[0], st0, st1))
    xdma(2)
    kdma(2)
    stamp()
    vGw = R.get("vGw")
    k("v_lshlrev_b32 v%d, 9, v%d" % (t[7], t[7]))
    k("v_lshl_add_u32 v%d, v%d, 12, v%d" % (t[7], t[5], t[7]))
    k("s_add_u32 s%d, s%d, 0x%x" % (st0, sw1k, HH + 31 * 16))
    k("v_add_u32 v%d, s%d, v%d" % (vGw, st0, t[7]))
    k("v_mov_b32 v%d, 0x3f803f80" % t[4])
    k("v_mov_b32 v%d, 0x3f803f80" % t[5])
    k("s_lshl_b32 s%d, s%d, 11" % (st0, sw))
    k("s_add_u32 s%d, s%d, 0x%x" % (st0, st0, VIMG + 24 * 16))
    k("v_lshrrev_b32 v%d, 1, v0" % t[0])
    k("v_lshl_add_u32 v%d, v%d, 9, s%d" % (t[0], t[0], st0))
    k("v_and_b32 v%d, 1, v0" % t[1])
    k("v_lshl_add_u32 v%d, v%d, 3, v%d" % (t[0], t[1], t[0]))
    assert t[4] % 2 == 0 or True
    vOne = R.get("vOne", 2)
    k("v_mov_b32 v%d, 0x3f803f80" % vOne)
    k("v_mov_b32 v%d, 0x3f803f80" % (vOne + 1))
    exec_set(0xff, 0)
    k("ds_write_b64 v%d, %s" % (t[0], vr(vOne, 2)))
    exec_all()
    R.rel("vOne")
    vHf = R.get("vHf")
    vRow = R.get("vRow")
    k("v_lshrrev_b32 v%d, 5, v0" % vHf)
    k("v_and_b32 v%d, 31, v0" % vRow)
    vXr = R.get("vXr", 8)
    k("v_bfe_u32 v%d, v0, 1, 3" % t[0])
    k("v_xor_b32 v%d, v%d, v%d" % (t[0], t[0], vHf))
    k("v_lshlrev_b32 v%d, 4, v%d" % (t[0], t[0]))
    k("v_lshl_add_u32 v%d, v%d, 7, v%d" % (t[0], vRow, t[0]))
    k("v_add_u32 v%d, s%d, v%d" % (vXr, sw4k, t[0]))
    for ks in range(1, 4):
        k("v_xor_b32 v%d, %d, v%d" % (vXr + ks, 32 * ks, vXr))
    for ks in range(4):
        k("v_add_u32 v%d, 0x10000, v%d" % (vXr + 4 + ks, vXr + ks))
    vWr0 = R.get("vWr0")
    vWrK = R.get("vWrK")
    k("v_bfe_u32 v%d, v0, 2, 2" % t[0])
    k("v_lshl_add_u32 v%d, v%d, 3, v%d" % (t[0], vHf, t[0]))
    k("v_lshlrev_b32 v%d, 6, v%d" % (t[0], t[0]))
    k("v_bfe_u32 v%d, v0, 4, 1" % t[1])
    k("v_lshl_add_u32 v%d, v%d, 5, v%d" % (t[0], t[1], t[0]))
    k("v_and_b32 v%d, 3, v0" % t[1])
    k("v_lshl_add_u32 v%d, v%d, 3, v%d" % (vWr0, t[1], t[0]))
    k("v_add_u32 v%d, 0x%x, v%d" % (vWrK, WK, vWr0))
    vL16 = R.get("vL16")
    vHr = R.get("vHr")
    vHw = R.get("vHw")
    k("v_lshlrev_b32 v%d, 4, v0" % vL16)
    k("v_add_u32 v%d, 0x%x, v%d" % (vHr, HH, vL16))
    k("v_add_u32 v%d, s%d, v%d" % (vHw, sw1k, vHr))
    vSt = R.get("vSt")
    vHs = R.get("vHs")
    vBa = R.get("vBa")
    k("s_mul_i32 s%d, s%d, 14" % (st0, sh))
    k("v_and_b32 v%d, 15, v0" % t[0])
    k("v_add_u32 v%d, s%d, v%d" % (t[0], st0, t[0]))
    k("v_cvt_f32_u32 v%d, v%d" % (t[0], t[0]))
    k("v_mul_f32 v%d, %s, v%d" % (vSt, fl(1.0 / 448), t[0]))
    k("v_mul_f32 v%d, 0.5, v%d" % (vHs, vSt))
    k("v_and_b32 v%d, 16, v0" % t[0])
    k("v_cvt_f32_u32 v%d, v%d" % (t[0], t[0]))
    k("v_mul_f32 v%d, %s, v%d" % (t[0], fl(1.0 / 64), t[0]))
    k("s_lshl_b32 s%d, s%d, 4" % (st0, sw))
    k("v_lshl_add_u32 v%d, v%d, 3, s%d" % (t[1], vHf, st0))
    k("v_cvt_f32_u32 v%d, v%d" % (t[1], t[1]))
    k("v_fma_f32 v%d, v%d, v%d, v%d" % (vBa, t[1], vSt, t[0]))
    hA = R.get("hA", 8)
    hP = R.get("hP", 4)

    def hgen(c):
        L = []
        L.append("v_cvt_f32_u32 v%d, s%d" % (hA, SOX + c))
        L.append("v_fma_f32 v%d, v%d, v%d, v%d" % (hA, hA, vHs, vBa))
        L.append("v_fract_f32 v%d, v%d" % (hA, hA))
        for j in range(1, 8):
            L.append("v_add_f32 v%d, v%d, v%d" % (hA + j, hA + j - 1, vSt))
        for j in range(8):
            L.append("v_cos_f32 v%d, v%d" % (hA + j, hA + j))
        for j in range(4):
            L.append("v_cvt_pk_bf16_f32 v%d, v%d, v%d" % (hP + j, hA + 2 * j, hA + 2 * j + 1))
        L.append("s_mov_b32 exec_lo, 0x7fffffff")
        L.append("s_mov_b32 exec_hi, 0x7fffffff")
        L.append("ds_write_b128 v%d, %s offset:%d" % (vHw, vr(hP, 4), c * 4096))
        L.append("s_mov_b64 exec, -1")
        return L

    for c in range(3):
        for s in hgen(c):
            k(s)
    vFc = R.get("vFc", 8)
    vFs = R.get("vFs", 8)
    k("v_cvt_f32_u32 v%d, v%d" % (t[0], vRow))
    k("v_mul_f32 v%d, %s, v%d" % (t[0], fl(1.0 / 32), t[0]))
    k("v_lshl_add_u32 v%d, v%d, 8, s%d" % (t[1], vHf, ss2))
    k("v_cvt_f32_u32 v%d, v%d" % (t[1], t[1]))
    k("v_mul_f32 v%d, %s, v%d" % (t[1], fl(1.0 / 64), t[1]))
    k("v_mul_f32 v%d, v%d, v%d" % (t[1], t[1], t[0]))
    for i in range(8):
        ks, j = i >> 2, 2 * (i & 3)
        for e in range(2):
            cst = 16 * ks + 8 * ((j + e) >> 2) + ((j + e) & 3)
            k("v_fmamk_f32 v%d, v%d, %s, v%d" % (t[2 + e], t[0], fl(cst), t[1]))
        k("v_cos_f32 v%d, v%d" % (t[4], t[2]))
        k("v_cos_f32 v%d, v%d" % (t[5], t[3]))
        k("v_sin_f32 v%d, -v%d" % (t[6], t[2]))
        k("v_sin_f32 v%d, -v%d" % (t[7], t[3]))
        k("v_cvt_pk_bf16_f32 v%d, v%d, v%d" % (vFc + i, t[4], t[5]))
        k("v_cvt_pk_bf16_f32 v%d, v%d, v%d" % (vFs + i, t[6], t[7]))
    vGK = R.get("vGK")
    vGQ = R.get("vGQ")
    k("v_mul_u32_u24 v%d, 224, v%d" % (t[0], vHf))
    k("v_bfe_u32 v%d, v0, 2, 1" % t[1])
    k("v_mad_u32_u24 v%d, v%d, 28, v%d" % (t[0], t[1], t[0]))
    k("v_and_b32 v%d, 24, v0" % t[1])
    k("v_add_u32 v%d, v%d, v%d" % (t[0], t[0], t[1]))
    k("v_and_b32 v%d, 3, v0" % t[1])
    k("v_lshl_add_u32 v%d, v%d, 1, v%d" % (t[0], t[1], t[0]))
    k("s_and_b32 s%d, s%d, 1" % (st0, sh))
    k("s_mul_i32 s%d, s%d, 1568" % (st0, st0))
    k("s_add_u32 s%d, s%d, 0x%x" % (st1, st0, XS(5)))
    k("v_add_u32 v%d, s%d, v%d" % (vGK, st1, t[0]))
    k("s_sub_u32 s%d, 0x%x, s%d" % (st1, XS(5) + 1568, st0))
    k("v_add_u32 v%d, s%d, v%d" % (vGQ, st1, t[0]))
    vPK = R.get("vPK", 8)
    vPQ = R.get("vPQ", 8)
    for i in range(8):
        k("v_mov_b32 v%d, 0" % (vPK + i))
        k("v_mov_b32 v%d, 0" % (vPQ + i))
    k("s_add_u32 s%d, s%d, 0x9e3779b9" % (sN, sN))
    stamp()

    gT = R.get("gT", 32)

    def gathers():
        for n, ad in enumerate((vGK, vGQ)):
            for i in range(8):
                for hi in range(2):
                    ks, j = i >> 2, 2 * (i & 3) + hi
                    if ks == 0:
                        d = 8 * (j >> 2) + (j & 3)
                    else:
                        d = 16 + j if j < 4 else 20 + (j & 3)
                    k("ds_read_u16 v%d, v%d offset:%d" % (gT + 16 * n + 2 * i + hi, ad, d * 56))

    def gather_pack():
        exec_set(0x33ffffff, 0x33ffffff)
        for part in range(2):
            if part == 1:
                k("s_mov_b32 exec_lo, 0")
            for n, dst in enumerate((vPK, vPQ)):
                for i in (range(6) if part == 0 else range(6, 8)):
                    k("v_lshl_or_b32 v%d, v%d, 16, v%d" % (dst + i, gT + 16 * n + 2 * i + 1, gT + 16 * n + 2 * i))
        exec_all()

    KT = R.get("KT", 16)
    HA = R.get("HA", 16)
    fW = R.get("fW", 16)
    fH = R.get("fH", 16)
    for c in range(7):
        k.wait_vm("x%d" % c)
        if c == 0:
            exec_set(0x3fff, 0)
            k("ds_write_b128 v%d, %s" % (vGw, vr(vGate, 4)))
            exec_all()
        k.wait_lg()
        k.barrier()
        if c in (0, 6):
            stamp()
        slot = c % 6
        for ks in range(4):
            k("ds_read_b64_tr_b16 %s, v%d offset:%d" % (vr(fW + 4 * ks, 2), vWrK, c * 4096 + ks * 1024))
            k("ds_read_b64_tr_b16 %s, v%d offset:%d" % (vr(fW + 4 * ks + 2, 2), vWrK, c * 4096 + ks * 1024 + 256))
            k("ds_read_b128 %s, v%d offset:%d" % (ar(16 * c + 4 * ks, 4), vXr + ks + (4 if slot >= 4 else 0),
                                                  XS(slot) & 0xffff))
            k("ds_read_b128 %s, v%d offset:%d" % (vr(fH + 4 * ks, 4), vHr, c * 4096 + ks * 1024))
        fill = []
        if c + 3 <= 6:
            fill = hgen(c + 3)
        mf = []
        for ks in range(4):
            x = ar(16 * c + 4 * ks, 4)
            first = c == 0 and ks == 0
            mf.append("v_mfma_f32_32x32x16_bf16 %s, %s, %s, %s" % (vr(KT, 16), vr(fW + 4 * ks, 4), x,
                                                                  "0" if first else vr(KT, 16)))
            mf.append("v_mfma_f32_32x32x16_bf16 %s, %s, %s, %s" % (vr(HA, 16), x, vr(fH + 4 * ks, 4),
                                                                  "0" if first else vr(HA, 16)))
        nf = len(fill)
        fi = 0
        for i, m in enumerate(mf):
            k(m)
            tgt = min(nf, (i + 1) * 3) if i < 7 else nf
            while fi < tgt:
                k(fill[fi])
                fi += 1
        if c == 0:
            gathers()
        if c == 1:
            gather_pack()
        if c + 3 <= 6:
            xdma(c + 3)
            kdma(c + 3)
        elif c == 4:
            for cc in range(4):
                vdma(cc)
        elif c == 5:
            for cc in range(4, 7):
                vdma(cc)
        elif c == 6:
            for cc in range(7):
                qdma(cc)
    R.rel("gT", "vGate", "vGw", "vGK", "vGQ", "vSt", "vHs", "vBa", "hA", "hP", "vHw", "vHr", "vXr", "vX", "fH", "vWrK")

    def softmax(P, out):
        mx, mn, a, b = t[0], t[1], t[2], t[3]
        k("v_max3_f32 v%d, v%d, v%d, v%d" % (mx, P, P + 1, P + 2))
        k("v_max3_f32 v%d, -v%d, -v%d, -v%d" % (mn, P, P + 1, P + 2))
        for i in range(3, 13, 2):
            k("v_max3_f32 v%d, v%d, v%d, v%d" % (mx, mx, P + i, P + i + 1))
            k("v_max3_f32 v%d, v%d, -v%d, -v%d" % (mn, mn, P + i, P + i + 1))
        k("v_max_f32 v%d, v%d, v%d" % (mx, mx, P + 13))
        k("v_max_f32_e64 v%d, v%d, -v%d" % (mn, mn, P + 13))
        k("v_permlane32_swap_b32 v%d, v%d" % (mx, mn))
        k("v_max_f32 v%d, v%d, v%d" % (mx, mx, mn))
        k("v_mul_f32 v%d, %s, v%d" % (mx, fl(-LOG2E), mx))
        k("v_mov_b32 v%d, v%d" % (mn, mx))
        k("s_mov_b32 s%d, %s" % (sc0, fl(LOG2E)))
        k("v_permlane32_swap_b32 v%d, v%d" % (mx, mn))
        E = R.get("smE", 14)
        for i in range(14):
            k("v_fma_f32 v%d, v%d, s%d, v%d" % (E + i, P + i, sc0, mx))
            k("v_fma_f32 v%d, -v%d, s%d, v%d" % (P + i, P + i, sc0, mn))
        for i in range(14):
            k("v_exp_f32 v%d, v%d" % (E + i, E + i))
            k("v_exp_f32 v%d, v%d" % (P + i, P + i))
        k("v_add_f32 v%d, v%d, v%d" % (a, E, E + 1))
        k("v_add_f32 v%d, v%d, v%d" % (b, P, P + 1))
        for i in range(2, 14):
            k("v_add_f32 v%d, v%d, v%d" % (a, a, E + i))
            k("v_add_f32 v%d, v%d, v%d" % (b, b, P + i))
        k("v_permlane32_swap_b32 v%d, v%d" % (a, b))
        k("v_add_f32 v%d, v%d, v%d" % (a, a, b))
        k("v_rcp_f32 v%d, v%d" % (a, a))
        k("v_mov_b32 v%d, 0" % (out + 7))
        k("v_mov_b32 v%d, v%d" % (b, a))
        k("v_mov_b32 v%d, 0" % (out + 15))
        k("v_permlane32_swap_b32 v%d, v%d" % (a, b))
        for i in range(7):
            k("v_mul_f32 v%d, v%d, v%d" % (E + 2 * i, E + 2 * i, a))
            k("v_mul_f32 v%d, v%d, v%d" % (E + 2 * i + 1, E + 2 * i + 1, a))
            k("v_cvt_pk_bf16_f32 v%d, v%d, v%d" % (out + i, E + 2 * i, E + 2 * i + 1))
        for i in range(7):
            k("v_mul_f32 v%d, v%d, v%d" % (P + 2 * i, P + 2 * i, b))
            k("v_mul_f32 v%d, v%d, v%d" % (P + 2 * i + 1, P + 2 * i + 1, b))
            k("v_cvt_pk_bf16_f32 v%d, v%d, v%d" % (out + 8 + i, P + 2 * i, P + 2 * i + 1))
        R.rel("smE")

    def phi_proj(acc, wf, P):
        B = R.get("pB", 8)
        for i in range(8):
            k("v_cvt_pk_bf16_f32 v%d, v%d, v%d" % (B + i, acc + 2 * i, acc + 2 * i + 1))
        k("v_mfma_f32_32x32x16_bf16 %s, %s, %s, 0" % (vr(P, 16), vr(wf, 4), vr(B, 4)))
        k("v_mfma_f32_32x32x16_bf16 %s, %s, %s, %s" % (vr(P, 16), vr(wf + 4, 4), vr(B + 4, 4), vr(P, 16)))
        R.rel("pB")

    PK = R.get("PK", 16)
    phi_proj(KT, vPK, PK)
    R.rel("KT", "vPK")
    k("s_add_u32 s%d, s%d, 2048" % (st0, sw4k))
    k("v_lshl_add_u32 v%d, v%d, 4, s%d" % (t[4], vHf, st0))
    exec_set(0x80000000, 0x80000000)
    for mm in range(4):
        k("ds_write_b128 v%d, %s offset:%d" % (t[4], vr(HA + 4 * mm, 4), 32 * mm))
    exec_all()
    hB = R.get("hB", 8)
    for i in range(8):
        k("v_cvt_pk_bf16_f32 v%d, v%d, v%d" % (hB + i, HA + 2 * i, HA + 2 * i + 1))
    vLog = R.get("vLog")
    k("v_lshl_add_u32 v%d, v%d, 2, s%d" % (t[5], vRow, st0))
    k("ds_read_b32 v%d, v%d" % (vLog, t[5]))
    ZP = HA
    ZQ = R.get("ZQ", 16)
    k("v_mfma_f32_32x32x16_bf16 %s, %s, %s, 0" % (vr(ZQ, 16), vr(hB, 4), vr(vFs, 4)))
    k("v_mfma_f32_32x32x16_bf16 %s, %s, %s, %s" % (vr(ZQ, 16), vr(hB + 4, 4), vr(vFs + 4, 4), vr(ZQ, 16)))
    k.wait_lg()
    k("v_mfma_f32_32x32x16_bf16 %s, %s, %s, 0" % (vr(ZP, 16), vr(hB, 4), vr(vFc, 4)))
    k("v_mfma_f32_32x32x16_bf16 %s, %s, %s, %s" % (vr(ZP, 16), vr(hB + 4, 4), vr(vFc + 4, 4), vr(ZP, 16)))
    PH = R.get("PH", 16)
    softmax(PK, PH)
    k("v_and_b32 v%d, 7, v0" % t[0])
    k("v_xor_b32 v%d, v%d, v%d" % (t[0], t[0], vHf))
    k("v_lshlrev_b32 v%d, 4, v%d" % (t[0], t[0]))
    k("v_lshl_add_u32 v%d, v%d, 7, v%d" % (t[0], vRow, t[0]))
    k("s_add_u32 s%d, s%d, 0x%x" % (st0, sw4k, XS(5)))
    k("v_add_u32 v%d, s%d, v%d" % (t[0], st0, t[0]))
    for ks in range(1, 4):
        k("v_xor_b32 v%d, %d, v%d" % (t[ks], 32 * ks, t[0]))
    for ks in range(4):
        k("ds_write_b128 v%d, %s" % (t[ks], vr(PH + 4 * ks, 4)))
    R.rel("PK", "PH")
    stamp()
    vZ = R.get("vZ", 8)
    for i in range(8):
        k("v_sub_f32 v%d, v%d, v%d" % (t[4], ZP + i, ZQ + 8 + i))
        k("v_add_f32 v%d, v%d, v%d" % (t[5], ZP + 8 + i, ZQ + i))
        k("v_cvt_pk_bf16_f32 v%d, v%d, v%d" % (vZ + i, t[4], t[5]))
    k("v_bfe_u32 v%d, v0, 1, 2" % t[4])
    k("v_xor_b32 v%d, v%d, v%d" % (t[4], t[4], vHf))
    k("v_lshlrev_b32 v%d, 4, v%d" % (t[4], t[4]))
    k("v_lshl_add_u32 v%d, v%d, 6, v%d" % (t[4], vRow, t[4]))
    k("v_add_u32 v%d, s%d, v%d" % (t[4], sw4k, t[4]))
    k("v_xor_b32 v%d, 32, v%d" % (t[5], t[4]))
    k("ds_write_b128 v%d, %s" % (t[4], vr(vZ, 4)))
    k("ds_write_b128 v%d, %s" % (t[5], vr(vZ + 4, 4)))
    R.rel("HA", "ZQ", "hB", "vFc", "vFs")
    vG = R.get("vG")
    k("v_mul_f32 v%d, %s, v%d" % (vG, fl(-LOG2E), vLog))
    k("v_exp_f32 v%d, v%d" % (vG, vG))
    k("v_add_f32 v%d, 1.0, v%d" % (vG, vG))
    k("v_rcp_f32 v%d, v%d" % (vG, vG))
    R.rel("vLog")
    k("v_lshrrev_b32 v%d, 4, v0" % t[0])
    k("v_bfe_u32 v%d, v0, 2, 2" % t[1])
    k("v_xor_b32 v%d, v%d, v%d" % (t[1], t[1], vHf))
    k("v_lshlrev_b32 v%d, 4, v%d" % (t[1], t[1]))
    k("v_lshl_add_u32 v%d, v%d, 6, v%d" % (t[1], t[0], t[1]))
    k("v_and_b32 v%d, 3, v0" % t[2])
    k("v_lshl_add_u32 v%d, v%d, 2, v%d" % (t[1], t[2], t[1]))
    k("s_lshl_b32 s%d, s%d, 9" % (st0, sw))
    k("v_add_u32 v%d, s%d, v%d" % (t[1], st0, t[1]))
    k("s_movk_i32 s%d, 0x100" % st1)
    k("v_xad_u32 v%d, v%d, 32, s%d" % (t[2], t[1], st1))
    k("v_and_b32 v%d, 15, v0" % t[3])
    k("v_lshlrev_b32 v%d, 4, v%d" % (t[3], t[3]))
    k("v_lshl_add_u32 v%d, v%d, 16, v%d" % (t[3], t[0], t[3]))
    k("s_lshl_b32 s%d, s%d, 19" % (st0, sw))
    k("s_lshl_b32 s%d, s%d, 12" % (st1, sr))
    k("s_add_u32 s%d, s%d, s%d" % (st0, st0, st1))
    k("s_lshl_b32 s%d, s%d, 8" % (st1, sh))
    k("s_add_u32 s%d, s%d, s%d" % (st0, st0, st1))
    k("s_add_u32 s%d, s%d, 0x%x" % (st0, st0, ZOFF))
    k("s_add_u32 s%d, s%d, 0x40000" % (st1, st0))
    k.wait_vm("v3")
    k.wait_lg()
    k.barrier()
    k("ds_read2st64_b32 %s, v%d offset0:0 offset1:16" % (vr(vZ, 2), t[1]))
    k("ds_read2st64_b32 %s, v%d offset0:32 offset1:48" % (vr(vZ + 2, 2), t[1]))
    k("ds_read2st64_b32 %s, v%d offset0:0 offset1:16" % (vr(vZ + 4, 2), t[2]))
    k("ds_read2st64_b32 %s, v%d offset0:32 offset1:48" % (vr(vZ + 6, 2), t[2]))

    def wread(dst, base, off):
        k("ds_read_b64_tr_b16 %s, v%d offset:%d" % (vr(dst, 2), base, off))
        k("ds_read_b64_tr_b16 %s, v%d offset:%d" % (vr(dst + 2, 2), base, off + 256))

    def wgemm(acc, base, off0, chunks, swap, first):
        seq = [(c, ks) for c in chunks for ks in range(4)]
        off = lambda c, ks: off0 + (c // 4) * 16384 + ks * 4096 + (c % 4) * 1024
        for i in range(min(3, len(seq))):
            wread(fW + 4 * (i % 4), base, off(*seq[i]))
        for i, (c, ks) in enumerate(seq):
            if i + 3 < len(seq):
                wread(fW + 4 * ((i + 3) % 4), base, off(*seq[i + 3]))
            x = ar(16 * c + 4 * ks, 4)
            wv = vr(fW + 4 * (i % 4), 4)
            a, b = (x, wv) if swap else (wv, x)
            k("v_mfma_f32_32x32x16_bf16 %s, %s, %s, %s" % (vr(acc, 16), a, b,
                                                          "0" if (first and i == 0) else vr(acc, 16)))

    k("buffer_store_dwordx4 %s, v%d, %s, s%d offen sc1" % (vr(vZ, 4), t[3], srd(SWS), st0))
    k("buffer_store_dwordx4 %s, v%d, %s, s%d offen sc1" % (vr(vZ + 4, 4), t[3], srd(SWS), st1))
    k("s_cmp_lg_u32 s%d, 0" % sh)
    k("s_cbranch_scc1 .Lnog")
    with k.cond_block():
        k("s_lshl_b32 s%d, s%d, 7" % (st2, ss2))
        k("s_add_u32 s%d, s%d, 0x%x" % (st2, st2, GOFF))
        k("v_lshlrev_b32 v%d, 2, v%d" % (t[4], vRow))
        k("buffer_store_dword v%d, v%d, %s, s%d offen sc1" % (vG, t[4], srd(SWS), st2))
    k.label(".Lnog")
    VA = R.get("VA", 16)
    wgemm(VA, vWr0, XS(1), range(4), True, True)
    k.wait_vm("v6")
    k.barrier()
    wgemm(VA, vWr0, XS(1), range(4, 7), True, False)
    R.rel("vZ")
    k("s_lshl_b32 s%d, s%d, 11" % (st0, sw))
    k("s_add_u32 s%d, s%d, 0x%x" % (st0, st0, VIMG))
    k("v_add_u32 v%d, s%d, v%d" % (t[0], st0, vL16))
    k("v_bfe_u32 v%d, v0, 2, 3" % t[1])
    k("v_lshl_add_u32 v%d, v%d, 4, v%d" % (t[2], vHf, t[1]))
    k("v_bfe_u32 v%d, v0, 1, 1" % t[3])
    k("s_lshl_b32 s%d, s%d, 1" % (st1, sw))
    k("v_add_u32 v%d, s%d, v%d" % (t[3], st1, t[3]))
    k("v_xor_b32 v%d, v%d, v%d" % (t[3], t[3], t[1]))
    k("v_lshlrev_b32 v%d, 4, v%d" % (t[3], t[3]))
    k("v_lshl_add_u32 v%d, v%d, 7, v%d" % (t[2], t[2], t[3]))
    k("v_and_b32 v%d, 1, v0" % t[3])
    k("v_lshl_add_u32 v%d, v%d, 3, v%d" % (t[2], t[3], t[2]))
    k("v_add_u32 v%d, 0x%x, v%d" % (t[2], XS(5), t[2]))
    k("v_lshrrev_b32 v%d, 4, v0" % t[3])
    k("v_and_b32 v%d, 15, v0" % t[4])
    k("v_lshlrev_b32 v%d, 4, v%d" % (t[4], t[4]))
    k("v_lshl_add_u32 v%d, v%d, 9, v%d" % (t[3], t[3], t[4]))
    k("v_add_u32 v%d, 0x%x, v%d" % (t[3], VIMG, t[3]))
    fA = R.get("fA", 16)
    for ww in range(4):
        k("ds_read_b64_tr_b16 %s, v%d offset:%d" % (vr(fA + 4 * ww, 2), t[2], ww * 4096))
        k("ds_read_b64_tr_b16 %s, v%d offset:%d" % (vr(fA + 4 * ww + 2, 2), t[2], ww * 4096 + 1024))
    vB = R.get("vB", 8)
    for i in range(8):
        k("v_cvt_pk_bf16_f32 v%d, v%d, v%d" % (vB + i, VA + 2 * i, VA + 2 * i + 1))
    exec_set(0xfeffffff, 0xfeffffff)
    k("ds_write_b128 v%d, %s" % (t[0], vr(vB, 4)))
    k("ds_write_b128 v%d, %s offset:1024" % (t[0], vr(vB + 4, 4)))
    exec_all()
    R.rel("VA", "vB")
    k.wait_lg()
    k.barrier()
    fV = R.get("fV", 32)
    for ww in range(4):
        for T in range(2):
            k("ds_read_b128 %s, v%d offset:%d" % (vr(fV + 8 * ww + 4 * T, 4), t[3], ww * 2048 + T * 256))
    kvA = R.get("kvA", 8)
    for ww in range(4):
        for T in range(2):
            k("v_mfma_f32_16x16x32_bf16 %s, %s, %s, %s" % (vr(kvA + 4 * T, 4), vr(fA + 4 * ww, 4),
                                                          vr(fV + 8 * ww + 4 * T, 4),
                                                          "0" if ww == 0 else vr(kvA + 4 * T, 4)))
    k("s_lshl_b32 s%d, s%d, 16" % (st0, sh))
    k("s_lshl_b32 s%d, s%d, 12" % (st1, sr))
    k("s_add_u32 s%d, s%d, s%d" % (st0, st0, st1))
    k("s_add_u32 s%d, s%d, s%d" % (st0, st0, sw1k))
    k("s_add_u32 s%d, s%d, 0x%x" % (st0, st0, KVP))
    k("s_lshl_b32 s%d, s%d, 4" % (st1, sw))
    k("s_add_u32 s%d, s%d, s%d" % (st1, st1, sh))
    k("s_lshl_b32 s%d, s%d, 4" % (st1, st1))
    k("s_add_u32 s%d, s%d, s%d" % (st1, st1, sr))
    k("s_lshl_b32 s%d, s%d, 5" % (st1, st1))
    k("s_add_u32 s%d, s%d, 0x%x" % (st1, st1, FLAG_KV))
    vN = R.get("vN")
    vZero = R.get("vZero")
    k("v_mov_b32 v%d, s%d" % (vN, sN))
    k("v_mov_b32 v%d, 0" % vZero)
    kvP = R.get("kvP", 4)
    for i in range(4):
        k("v_cvt_pk_bf16_f32 v%d, v%d, v%d" % (kvP + i, kvA + 2 * i, kvA + 2 * i + 1))
    k("v_permlane16_swap_b32 v%d, v%d" % (kvP, kvP + 2))
    k("v_permlane16_swap_b32 v%d, v%d" % (kvP + 1, kvP + 3))
    k("buffer_store_dwordx4 %s, v%d, %s, s%d offen sc1" % (vr(kvP, 4), vL16, srd(SWS), st0))
    stamp()
    k.waitcnt(vm=0)
    exec_set(1, 0)
    k("buffer_store_dword v%d, v%d, %s, s%d offen sc1" % (vN, vZero, srd(SWS), st1))
    exec_all()
    stamp()
    R.rel("fA", "fV", "kvA", "kvP")
    k("s_mul_i32 s%d, s%d, 37" % (st0, sidx))
    k("s_lshr_b32 s%d, s%d, 8" % (st0, st0))
    k("s_mul_i32 s%d, s%d, 7" % (st1, st0))
    k("s_sub_u32 s%d, s%d, s%d" % (sj, sidx, st1))
    k("s_and_b32 s%d, s2, 7" % st1)
    k("s_lshl2_add_u32 s%d, s%d, s%d" % (st1_, st1, st0))
    k("s_lshr_b32 s%d, s%d, 1" % (sp, sw))
    k("s_and_b32 s%d, s%d, 1" % (su, sw))
    k("s_lshl_b32 s%d, s%d, 5" % (ss2g, sp))
    k("s_add_u32 s%d, s%d, s%d" % (ss2g, ss2g, st1_))
    k("s_cmp_ge_u32 s%d, 28" % sidx)
    k("s_cbranch_scc1 .Lnowo")
    with k.cond_block():
        wv = R.get("wv", 6)
        k("v_lshrrev_b32 v%d, 3, v0" % t[0])
        k("v_bfe_u32 v%d, v0, 4, 1" % t[1])
        k("v_lshlrev_b32 v%d, 1, v%d" % (t[1], t[1]))
        k("v_xor_b32 v%d, v%d, v0" % (t[1], t[1]))
        k("v_and_b32 v%d, 7, v%d" % (t[1], t[1]))
        k("v_lshlrev_b32 v%d, 4, v%d" % (t[1], t[1]))
        k("s_movk_i32 s%d, 896" % st0)
        k("v_mad_u32_u24 v%d, v%d, s%d, v%d" % (wv + 2, t[0], st0, t[1]))
        k("s_movk_i32 s%d, %d" % (st1, 4 * 896))
        k("v_mad_u32_u24 v%d, v%d, s%d, v%d" % (wv, vHf, st1, wv + 2))
        k("s_movk_i32 s%d, %d" % (st1, 24 * 896))
        k("v_mad_u32_u24 v%d, v%d, s%d, v%d" % (wv + 4, vHf, st1, wv + 2))
        for b in (0, 2, 4):
            k("v_xor_b32 v%d, 64, v%d" % (wv + b + 1, wv + b))
        k("s_mul_i32 s%d, s%d, %d" % (st0, sw, 4 * 28 * 896))
        k("s_lshl_b32 s%d, s%d, 7" % (st1, sj))
        k("s_add_u32 s%d, s%d, s%d" % (st0, st0, st1))
        k("s_mul_i32 s%d, s%d, 12288" % (st1, sw))
        k("s_add_u32 s%d, s%d, 0x%x" % (st1, st1, WK))
        for i in range(4):
            for ty in range(3):
                par = (i + ty) & 1
                k("s_add_u32 m0, s%d, %d" % (st1, (3 * i + ty) * 1024))
                k("s_add_u32 s%d, s%d, %d" % (st2, st0, (28 * i + (0, 4, 20)[ty]) * 896))
                k("buffer_load_dwordx4 v%d, %s, s%d offen lds" % (wv + (2 if ty == 2 else 0) + par, srd(SWO), st2),
                  tag="wo")
        k("s_lshl_b32 s%d, s%d, 11" % (st1, sw))
        for i in range(2):
            k("s_add_u32 m0, s%d, %d" % (st1, WK + 48 * 1024 + i * 1024))
            k("s_add_u32 s%d, s%d, %d" % (st2, st0, (56 * i + 16) * 896))
            k("buffer_load_dwordx4 v%d, %s, s%d offen lds" % (wv + 4 + i, srd(SWO), st2), tag="wo")
        R.rel("wv")
    k.label(".Lnowo")
    k.barrier()
    QT = R.get("QT", 16)
    k("v_add_u32 v%d, 0x%x, v%d" % (vWr0, XS(3), vWr0))
    wgemm(QT, vWr0, 0, range(7), False, True)
    PQ = R.get("PQ", 16)
    phi_proj(QT, vPQ, PQ)
    R.rel("QT", "vPQ", "fW", "vWr0", "vWk", "vWq")
    PHQ = R.get("PHQ", 16)
    softmax(PQ, PHQ)
    R.rel("PQ")
    stamp()
    k("s_lshl_b32 s%d, s%d, 4" % (st1, sw))
    k("s_add_u32 s%d, s%d, s%d" % (st1, st1, shq))
    k("s_lshl_b32 s%d, s%d, 9" % (st1, st1))
    k("s_add_u32 s%d, s%d, 0x%x" % (st1, st1, FLAG_KV))
    k("v_and_b32 v%d, 15, v0" % t[0])
    k("v_lshl_add_u32 v%d, v%d, 5, s%d" % (t[0], t[0], st1))
    k("s_lshl_b32 s%d, s%d, 16" % (st0, shq))
    k("s_add_u32 s%d, s%d, s%d" % (st0, st0, sw1k))
    k("s_add_u32 s%d, s%d, 0x%x" % (st0, st0, KVP))
    poll(t[0], t[1], "a")
    stamp()
    LD = R.get("LD", 64)
    for rr in range(16):
        k("buffer_load_dwordx4 %s, v%d, %s, s%d offen sc1" % (vr(LD + 4 * rr, 4), vL16, srd(SWS), st0))
        if rr < 15:
            k("s_add_u32 s%d, s%d, 0x1000" % (st0, st0))
    AC = R.get("AC", 8)
    k("s_mov_b32 s%d, 0x00003f80" % sc0)
    k("s_mov_b32 s%d, 0x3f800000" % sc1_)
    for i in range(4):
        k("v_lshlrev_b32 v%d, 16, v%d" % (AC + 2 * i, LD + i))
        k("v_and_b32 v%d, 0xffff0000, v%d" % (AC + 2 * i + 1, LD + i))
    for rr in range(1, 16):
        for i in range(4):
            k("v_dot2c_f32_bf16 v%d, s%d, v%d" % (AC + 2 * i, sc0, LD + 4 * rr + i))
            k("v_dot2c_f32_bf16 v%d, s%d, v%d" % (AC + 2 * i + 1, sc1_, LD + 4 * rr + i))
    k("s_add_u32 s%d, s%d, 3072" % (st0, sw4k))
    k("v_add_u32 v%d, s%d, v%d" % (t[0], st0, vL16))
    fK = R.get("fK", 16)
    for i in range(4):
        k("v_cvt_pk_bf16_f32 v%d, v%d, v%d" % (fK + i, AC + 2 * i, AC + 2 * i + 1))
    k("ds_write_b128 v%d, %s" % (t[0], vr(fK, 4)))
    R.rel("LD", "AC")
    k("s_mul_i32 s%d, s%d, %d" % (st0, ss2, 2 * 14336))
    k("s_add_u32 s%d, s%d, 0x%x" % (st0, st0, OOFF))
    k("s_mul_i32 s%d, s%d, 768" % (st1, shq))
    k("s_add_u32 s%d, s%d, s%d" % (st1, st1, st0))
    k("s_lshl_b32 s%d, s%d, 7" % (st2, shq))
    k("s_add_u32 s%d, s%d, s%d" % (st2, st2, st0))
    k("s_add_u32 s%d, s%d, 12288" % (st2, st2))
    k("v_bfe_u32 v%d, v0, 4, 1" % t[1])
    k("v_mul_u32_u24 v%d, 0x%x, v%d" % (t[1], 14336, t[1]))
    k("v_and_b32 v%d, 15, v0" % t[2])
    k("v_lshl_add_u32 v%d, v%d, 3, v%d" % (t[3], t[2], t[1]))
    k("v_lshl_add_u32 v%d, v%d, 4, v%d" % (t[2], t[2], t[1]))
    k("v_lshl_add_u32 v%d, v%d, 8, v%d" % (t[2], vHf, t[2]))
    k("s_lshl_b32 s%d, s%d, 4" % (st3, ss2))
    k("s_add_u32 s%d, s%d, s%d" % (st3, st3, shq))
    k("s_lshl_b32 s%d, s%d, 5" % (st3, st3))
    k("s_add_u32 s%d, s%d, 0x%x" % (st3, st3, FLAG_O))
    k("v_sub_f32 v%d, 1.0, v%d" % (vG, vG))
    k.wait_lg()
    k.barrier()
    for ks in range(4):
        k("ds_read_b128 %s, v%d offset:%d" % (vr(fK + 4 * ks, 4), vL16, ks * 4096 + 3072))
    OT = R.get("OT", 16)
    for ks in range(4):
        k("v_mfma_f32_32x32x16_bf16 %s, %s, %s, %s" % (vr(OT, 16), vr(fK + 4 * ks, 4), vr(PHQ + 4 * ks, 4),
                                                      "0" if ks == 0 else vr(OT, 16)))
    k("v_mov_b32 v%d, v%d" % (t[4], OT + 12))
    k("v_permlane32_swap_b32 v%d, v%d" % (t[4], OT + 12))
    k("v_add_f32 v%d, %s, v%d" % (t[4], fl(1e-6), t[4]))
    k("v_rcp_f32 v%d, v%d" % (t[4], t[4]))
    k("v_mul_f32 v%d, v%d, v%d" % (t[4], t[4], vG))
    oP = R.get("oP", 8)
    for i in range(8):
        k("v_mul_f32 v%d, v%d, v%d" % (OT + 2 * i, OT + 2 * i, t[4]))
        k("v_mul_f32 v%d, v%d, v%d" % (OT + 2 * i + 1, OT + 2 * i + 1, t[4]))
        k("v_cvt_pk_bf16_f32 v%d, v%d, v%d" % (oP + i, OT + 2 * i, OT + 2 * i + 1))
        if i == 3:
            k("buffer_store_dwordx4 %s, v%d, %s, s%d offen sc1" % (vr(oP, 4), t[2], srd(SWS), st1))
    exec_set(0, 0xffffffff)
    k("buffer_store_dwordx4 %s, v%d, %s, s%d offen offset:256 sc1" % (vr(oP + 4, 4), t[2], srd(SWS), st1))
    exec_set(0xffffffff, 0)
    k("buffer_store_dwordx2 %s, v%d, %s, s%d offen sc1" % (vr(oP + 4, 2), t[3], srd(SWS), st2))
    stamp()
    k.waitcnt(vm=0)
    exec_set(1, 0)
    k("buffer_store_dword v%d, v%d, %s, s%d offen sc1" % (vN, vZero, srd(SWS), st3))
    exec_all()
    stamp()
    R.rel("OT", "oP", "fK", "PHQ", "vG")
    k("s_cmp_ge_u32 s%d, 28" % sidx)
    k("s_cbranch_scc1 .Lfin")
    k("s_lshl_b32 s%d, s%d, 6" % (st0, sj))
    k("s_lshl_b32 s%d, s%d, 4" % (st1, sw))
    k("s_add_u32 s%d, s%d, s%d" % (st0, st0, st1))
    k("s_sub_u32 s%d, 32, s%d" % (st1, st1_))
    k("s_and_b32 s%d, s%d, 31" % (st1, st1))
    k("s_sub_u32 s%d, 448, s%d" % (st2, st0))
    k("s_cmp_ge_u32 s%d, 224" % st0)
    k("s_cselect_b32 s%d, s%d, s%d" % (stz, st1, st1_))
    k("s_cselect_b32 s%d, s%d, s%d" % (st0, st2, st0))
    k("s_cselect_b32 s%d, -1, 1" % smir)
    k("s_movk_i32 s%d, 4682" % st3)

    def head_of(dst, e):
        k("v_mul_u32_u24 v%d, s%d, v%d" % (dst, st3, e))
        k("v_lshrrev_b32 v%d, 16, v%d" % (dst, dst))
        k("v_min_u32 v%d, 15, v%d" % (dst, dst))

    k("v_lshrrev_b32 v%d, 4, v0" % t[0])
    k("v_and_b32 v%d, 15, v0" % t[1])
    k("v_lshlrev_b32 v%d, 3, v%d" % (t[2], t[0]))
    k("v_min_u32 v%d, 15, v%d" % (t[2], t[2]))
    k("v_mul_i32_i24 v%d, s%d, v%d" % (t[2], smir, t[2]))
    k("v_add_u32 v%d, s%d, v%d" % (t[2], st0, t[2]))
    head_of(t[3], t[2])
    k("s_lshr_b32 s%d, s%d, 3" % (st1, stz))
    k("s_lshl_b32 s%d, s%d, 13" % (st1, st1))
    k("s_add_u32 s%d, s%d, 0x%x" % (st1, st1, FLAG_KV))
    k("v_lshl_add_u32 v%d, v%d, 4, v%d" % (t[3], t[3], t[1]))
    k("v_lshl_add_u32 v%d, v%d, 5, s%d" % (t[3], t[3], st1))
    k("s_and_b32 s%d, s%d, 3" % (st1, ss2g))
    k("s_lshl_b32 s%d, s%d, 8" % (st1, st1))
    k("s_lshr_b32 s%d, s%d, 2" % (st2, ss2g))
    k("s_add_u32 s%d, s%d, s%d" % (st1, st1, st2))
    k("s_lshl_b32 s%d, s%d, 5" % (st1, st1))
    k("s_add_u32 s%d, s%d, 0x%x" % (st1, st1, FLAG_KV))
    exec_set(0, 0xffff0000)
    k("v_mov_b32 v%d, s%d" % (t[3], st1))
    exec_all()
    k("v_mul_i32_i24 v%d, s%d, v%d" % (t[2], smir, t[1]))
    k("v_add_u32 v%d, s%d, v%d" % (t[2], st0, t[2]))
    head_of(t[4], t[2])
    k("v_lshl_add_u32 v%d, v%d, 1, v%d" % (t[2], t[4], t[2]))
    k("v_lshlrev_b32 v%d, 4, v%d" % (t[2], t[2]))
    k("v_lshl_add_u32 v%d, v%d, 12, v%d" % (t[2], t[0], t[2]))
    k("s_lshl_b32 s%d, s%d, 16" % (st0, stz))
    k("s_add_u32 s%d, s%d, 0x%x" % (st0, st0, ZOFF))
    poll(t[3], t[4], "z")
    ZF = R.get("ZF", 64)
    for kk in range(4):
        k("buffer_load_dwordx4 %s, v%d, %s, s%d offen sc1" % (vr(ZF + 4 * kk, 4), t[2], srd(SWS), st0))
        if kk < 3:
            k("s_add_u32 s%d, s%d, 0x4000" % (st0, st0))
    vG2 = R.get("vG2")
    k("s_lshl_b32 s%d, s%d, 7" % (st0, ss2g))
    k("s_lshl_b32 s%d, s%d, 6" % (st1, su))
    k("s_add_u32 s%d, s%d, s%d" % (st0, st0, st1))
    k("s_add_u32 s%d, s%d, 0x%x" % (st0, st0, GOFF))
    k("v_lshlrev_b32 v%d, 2, v%d" % (t[4], t[1]))
    k("buffer_load_dword v%d, v%d, %s, s%d offen sc1" % (vG2, t[4], srd(SWS), st0))
    Wm = R.get("Wm", 32)
    k("s_lshl_b32 s%d, s%d, 5" % (st0, su))
    k("s_add_u32 s%d, s%d, s%d" % (st0, st0, sp))
    k("v_lshl_add_u32 v%d, v%d, 1, s%d" % (t[2], t[1], st0))
    k("s_cmp_lg_u32 s%d, 0" % st1_)
    k("s_cselect_b32 s%d, 1, 0" % st1)
    k("v_add_u32 v%d, s%d, v%d" % (t[3], st1, t[2]))
    k("v_cvt_f32_u32 v%d, v%d" % (t[2], t[2]))
    k("v_cvt_f32_u32 v%d, v%d" % (t[3], t[3]))
    k("v_mul_f32 v%d, %s, v%d" % (t[2], fl(1.0 / 64), t[2]))
    k("v_mul_f32 v%d, %s, v%d" % (t[3], fl(-1.0 / 64), t[3]))
    k("v_lshlrev_b32 v%d, 2, v%d" % (t[4], t[0]))
    k("v_cvt_f32_u32 v%d, v%d" % (t[4], t[4]))
    vS = R.get("vS", 2)
    for st in range(2):
        k("s_cmp_ge_u32 s%d, %d" % (sj, 4 - st))
        k("s_cselect_b64 vcc, -1, 0")
        k("v_cndmask_b32 v%d, v%d, v%d, vcc" % (vS, t[2], t[3]))
        k("v_mul_f32 v%d, v%d, v%d" % (vS + 1, vS, t[4]))
        for kk in range(4):
            for w in range(4):
                k("v_fmamk_f32 v%d, v%d, %s, v%d" % (t[5], vS, fl(16 * kk + w), vS + 1))
                k("v_cos_f32 v%d, v%d" % (t[6], t[5]))
                k("v_sin_f32 v%d, v%d" % (t[7], t[5]))
                k("v_cvt_pk_bf16_f32 v%d, v%d, v%d" % (Wm + 16 * st + 4 * kk + w, t[6], t[7]))
        if st == 0:
            k("s_add_u32 s%d, s%d, 0x%x" % (st0, sw4k, XS(1)))
            k("v_add_u32 v%d, s%d, v%d" % (t[5], st0, vL16))
            for kk in range(4):
                k("ds_write_b128 v%d, %s offset:%d" % (t[5], vr(ZF + 4 * kk, 4), kk * 1024))
    R.rel("vS")
    k.wait_lg()
    k.barrier()
    for ct in range(4):
        for kk in range(4):
            k("ds_read_b128 %s, v%d offset:%d" % (vr(ZF + 16 * ct + 4 * kk, 4), vL16, XS(1) + ct * 4096 + kk * 1024))
    wa = R.get("wa", 4)
    k("v_bfe_u32 v%d, v0, 2, 2" % t[2])
    k("v_lshlrev_b32 v%d, 7, v%d" % (t[2], t[2]))
    k("v_lshl_add_u32 v%d, v%d, 10, v%d" % (t[2], t[0], t[2]))
    k("v_and_b32 v%d, 3, v0" % t[3])
    k("v_lshl_add_u32 v%d, v%d, 3, v%d" % (t[2], t[3], t[2]))
    k("v_bfe_u32 v%d, v0, 3, 2" % t[3])
    k("v_lshl_add_u32 v%d, v%d, 5, v%d" % (t[2], t[3], t[2]))
    k("v_add_u32 v%d, 0x%x, v%d" % (wa, WK, t[2]))
    for ct in range(1, 4):
        k("v_xor_b32 v%d, %d, v%d" % (wa + ct, 32 * ct, wa))
    Y = R.get("Y", 16)
    for kk in range(4):
        for ct in range(4):
            k("v_mfma_f32_16x16x32_bf16 %s, %s, %s, %s" % (vr(Y + 4 * ct, 4), vr(ZF + 16 * ct + 4 * kk, 4),
                                                          vr(Wm + 16 * (ct >> 1) + 4 * kk, 4),
                                                          "0" if kk == 0 else vr(Y + 4 * ct, 4)))
    for kk in range(14):
        for ct in range(4):
            b = (kk * 4 + ct) * 4
            k("ds_read_b64_tr_b16 %s, v%d offset:%d" % (ar(b, 2), wa + ct, kk * 4096))
            k("ds_read_b64_tr_b16 %s, v%d offset:%d" % (ar(b + 2, 2), wa + ct, kk * 4096 + 512))
    for i in range(16):
        k("v_mul_f32 v%d, v%d, v%d" % (Y + i, Y + i, vG2))
    R.rel("ZF", "Wm", "wa", "vG2")
    k("s_lshl_b32 s%d, s%d, 9" % (st0, ss2g))
    k("s_add_u32 s%d, s%d, 0x%x" % (st0, st0, FLAG_O))
    k("v_lshl_add_u32 v%d, v%d, 5, s%d" % (t[2], t[1], st0))
    k("s_lshl1_add_u32 s%d, s%d, s%d" % (st0, ss2g, su))
    k("s_mul_i32 s%d, s%d, 14336" % (st0, st0))
    k("s_add_u32 s%d, s%d, 0x%x" % (st0, st0, OOFF))
    k("s_add_u32 s%d, s%d, 4096" % (st1, st0))
    k("s_add_u32 s%d, s%d, 8192" % (st2, st0))
    k("s_add_u32 s%d, s%d, 12288" % (st3, st0))
    k("v_lshlrev_b32 v%d, 3, v%d" % (t[3], t[1]))
    k("v_lshl_add_u32 v%d, v%d, 8, v%d" % (t[3], t[0], t[3]))
    stamp()
    poll(t[2], t[4], "o")
    stamp()
    OF = R.get("OF", 56)
    for kk in range(12):
        k("buffer_load_dwordx4 %s, v%d, %s, s%d offen offset:%d sc1" % (vr(OF + 4 * kk, 4), vL16, srd(SWS),
                                                                       (st0, st1, st2)[kk >> 2], (kk & 3) * 1024))
    for mk in range(2):
        for e in range(2):
            k("buffer_load_dwordx2 %s, v%d, %s, s%d offen offset:%d sc1" % (vr(OF + 48 + 4 * mk + 2 * e, 2), t[3],
                                                                           srd(SWS), st3, mk * 1024 + e * 128))
    k("s_or_b32 s%d, s2, s%d" % (st0, sw))
    k("s_cmp_lg_u32 s%d, 0" % st0)
    k("s_cbranch_scc1 .Lnoe")
    with k.cond_block():
        exec_set(1, 0)
        k("buffer_store_dword v%d, v%d, %s, 0 offen sc1" % (vN, vZero, srd(SWS)))
        exec_all()
    k.label(".Lnoe")
    k("s_lshl_b32 s%d, s%d, 10" % (st0, su))
    k("s_add_u32 s%d, s%d, s%d" % (st0, st0, ss2g))
    k("s_mul_i32 s%d, s%d, 896" % (st0, st0))
    k("s_lshl_b32 s%d, s%d, 7" % (st1, sj))
    k("s_add_u32 s%d, s%d, s%d" % (st0, st0, st1))
    k("v_mul_u32_u24 v%d, 0x%x, v%d" % (t[2], 57344, t[1]))
    k("v_lshl_add_u32 v%d, v%d, 4, v%d" % (t[2], vHf, t[2]))
    k("v_bfe_u32 v%d, v0, 4, 1" % t[4])
    k("v_lshl_add_u32 v%d, v%d, 5, v%d" % (t[2], t[4], t[2]))
    for kk in range(14):
        for ct in range(4):
            k("v_mfma_f32_16x16x32_bf16 %s, %s, %s, %s" % (vr(Y + 4 * ct, 4), ar((kk * 4 + ct) * 4, 4),
                                                          vr(OF + 4 * kk, 4), vr(Y + 4 * ct, 4)))
    fP = R.get("fP", 8)
    for half in range(2):
        for i in range(4):
            k("v_cvt_pk_bf16_f32 v%d, v%d, v%d" % (fP + 4 * half + i, Y + 8 * half + 2 * i, Y + 8 * half + 2 * i + 1))
        k("v_permlane16_swap_b32 v%d, v%d" % (fP + 4 * half, fP + 4 * half + 2))
        k("v_permlane16_swap_b32 v%d, v%d" % (fP + 4 * half + 1, fP + 4 * half + 3))
        k("buffer_store_dwordx4 %s, v%d, %s, s%d offen offset:%d" % (vr(fP + 4 * half, 4), t[2], srd(SOUT), st0,
                                                                    64 * half))
    stamp()
    k.label(".Lfin")
    if ts:
        k.raw("    s_waitcnt vmcnt(0) lgkmcnt(0)")
        k.raw("    s_memtime s[2:3]")
        k.raw("    s_waitcnt lgkmcnt(0)")
        k.raw("    s_lshl2_add_u32 s%d, s%d, s%d" % (st0, sr, sw))
        k.raw("    s_lshl_b32 s%d, s%d, 6" % (st1, sh))
        k.raw("    s_add_u32 s%d, s%d, s%d" % (st0, st0, st1))
        k.raw("    s_lshl_b32 s%d, s%d, 7" % (st0, st0))
        k.raw("    s_add_u32 s%d, s%d, 0x%x" % (st0, st0, TSOFF))
        k.raw("    s_mov_b64 exec, 1")
        k.raw("    v_mov_b32 v1, 0")
        for i in range(nts[0]):
            k.raw("    v_mov_b32 v2, s%d" % (TS0 + 2 * i))
            k.raw("    buffer_store_dword v2, v1, %s, s%d offen offset:%d" % (srd(SWS), st0, 4 * i))
        k.raw("    v_mov_b32 v2, s2")
        k.raw("    buffer_store_dword v2, v1, %s, s%d offen offset:%d" % (srd(SWS), st0, 4 * nts[0]))
        k.raw("    s_waitcnt vmcnt(0)")
        if o.get("dbg"):
            k.raw("    s_load_dwordx2 s[4:5], s[0:1], 88")
            k.raw("    s_memrealtime s[2:3]")
            k.raw("    s_waitcnt lgkmcnt(0)")
            k.raw("    s_mov_b32 s6, 256")
            k.raw("    s_mov_b32 s7, 0x20000")
            k.raw("    v_mov_b32 v2, s2")
            k.raw("    buffer_atomic_umax v2, v1, s[4:7], 0 offen")
            k.raw("    s_not_b32 s2, s%d" % TS0)
            k.raw("    v_mov_b32 v3, s2")
            k.raw("    buffer_atomic_umax v3, v1, s[4:7], 0 offen offset:4")
            k.raw("    v_mov_b32 v4, s%d" % TS0)
            k.raw("    buffer_atomic_umax v4, v1, s[4:7], 0 offen offset:8")
            for i in range(2, 15):
                k.raw("    s_sub_u32 s2, s%d, s%d" % (TS0 + 2 * i, TS0 + 2))
                k.raw("    s_cmp_ge_u32 s2, 0x100000")
                k.raw("    s_cselect_b32 s2, 0, s2")
                k.raw("    v_mov_b32 v%d, s2" % (3 + i))
                k.raw("    buffer_atomic_umax v%d, v1, s[4:7], 0 offen offset:%d" % (3 + i, 4 * (i + 1)))
            k.raw("    s_waitcnt vmcnt(0)")
    k.label(".Lend")
    k.raw("    s_endpgm")
    body = k.text()
    return body, R.high, k


def build(path, **kw):
    body, high, k = gen(**kw)
    import subprocess, os
    lab = KNAME + "_kernel"

    def mk(pf):
        return wrap([(lab, body.replace("CODE_PF_MAX", "0x%x" % pf), 256, 256, 102)], [(lab, 256, 256, 163840)])

    open(path, "w").write(mk(0x1000))
    sys.path.insert(0, "cdna_kernels")
    import cdna_launch as L
    h = L.with_harness_metadata(open(path).read(), lab, 13, launch_lists=True)
    open("_g.s", "w").write(h)
    r = subprocess.run(["clang", "-x", "assembler", "-target", "amdgcn-amd-amdhsa", "-mcpu=gfx950",
                        "-c", "_g.s", "-o", "_g.o"], capture_output=True, text=True)
    assert r.returncode == 0, r.stderr
    r = subprocess.run(["llvm-objdump", "-d", "_g.o"], capture_output=True, text=True)
    lines = [l for l in r.stdout.split("\n") if "//" in l]
    addr = lambda l: int(l.split("//")[1].split(":")[0], 16)
    end = addr(lines[-1]) + 4
    pc = [addr(l) + 4 for l in lines if "s_getpc" in l]
    pf = 0
    if pc:
        pf = end - pc[0] - 128
        pf -= pf % 4
    open(path, "w").write(mk(pf))
    print(path, "instrs", k.count, "nops", k.nops, "vgpr high", high, "code bytes", end)


if __name__ == "__main__":
    build("k_ts.s", ts=True)
    build("k.s", ts=False)
    build("k_dbg.s", ts=True, opts=dict(dbg=1))
```
